```python
import torch

def _softmax(x, axis=-1):
    return torch.softmax(x, dim=axis)
def _gelu(x):
    return torch.nn.functional.gelu(x, approximate="tanh")
def _silu(x):
    return torch.nn.functional.silu(x)
def _sigmoid(x):
    return torch.sigmoid(x)
def _layernorm(x, axis=-1, eps=1e-5):
    m = x.mean(dim=axis, keepdim=True)
    v = x.var(dim=axis, keepdim=True, unbiased=False)
    return (x - m) / torch.sqrt(v + eps)
def _scatter_add(tgt, idx, src, axis=0):
    return tgt.clone().index_add_(axis, idx, src)
def _segment_sum(src, seg, n):
    out = torch.zeros((n,) + src.shape[1:], dtype=src.dtype)
    return out.index_add_(0, seg, src)
def _pad(x, pw):
    flat = tuple(v for pair in reversed(pw) for v in pair)
    return torch.nn.functional.pad(x, flat)

kernel_name = 'sequential_preLN__grouped_kv_mqa__mixer_channel_mlp__prompt'

def setup_inputs():

    _w = (lambda a: (lambda t: t.to(torch.bfloat16) if t.is_floating_point() else t)(torch.as_tensor(a)))
    def _A_setup():
        B, S, D, H = 1, 2048, 576, 32
        Dh = D // H
        return {
            "x": _w((lambda *s: torch.randn(*s, dtype=torch.bfloat16) * 0.05)(B, S, D)),
            "wq": _w((lambda *s: torch.randn(*s, dtype=torch.bfloat16) * 0.05)(D, H * Dh)),
            "wk": _w((lambda *s: torch.randn(*s, dtype=torch.bfloat16) * 0.05)(D, Dh)),
            "wv": _w((lambda *s: torch.randn(*s, dtype=torch.bfloat16) * 0.05)(D, Dh)),
            "wo": _w((lambda *s: torch.randn(*s, dtype=torch.bfloat16) * 0.05)(H * Dh, D)),
        }
    _A_in = _A_setup()

    def _B_setup():
        B, S, D, F = 1, 2048, 576, 4608
        return {
            "x": _w((lambda *s: torch.randn(*s, dtype=torch.bfloat16) * 0.05)(B, S, D)),
            "w1": _w((lambda *s: torch.randn(*s, dtype=torch.bfloat16) * 3.2)(D, F) * (D ** -0.5)),
            "b1": _w((lambda *s: torch.randn(*s, dtype=torch.bfloat16) * 1.6)(F)),
            "w2": _w((lambda *s: torch.randn(*s, dtype=torch.bfloat16) * 0.1)(F, D) * (F ** -0.5)),
            "b2": _w((lambda *s: torch.randn(*s, dtype=torch.bfloat16) * 0.2)(D)),
        }
    _B_in = _B_setup()

    return {
        "A_x": _A_in["x"],
        "A_wq": _A_in["wq"],
        "A_wk": _A_in["wk"],
        "A_wv": _A_in["wv"],
        "A_wo": _A_in["wo"],
        "B_x": _B_in["x"],
        "B_w1": _B_in["w1"],
        "B_b1": _B_in["b1"],
        "B_w2": _B_in["w2"],
        "B_b2": _B_in["b2"],
    }

def reference(A_x, A_wq, A_wk, A_wv, A_wo, B_x, B_w1, B_b1, B_w2, B_b2):
    def _A_ref(x, wq, wk, wv, wo):
        B, S, D = x.shape
        H = 32
        Dh = D // H
        q = (lambda x, *d: x.permute(*d))((x @ wq).reshape(B, S, H, Dh), 0, 2, 1, 3)
        k = x @ wk
        v = x @ wv
        scores = torch.einsum("bhqd,bkd->bhqk", q, k) * (Dh ** -0.5)
        p = _softmax(scores, axis=-1)
        o = torch.einsum("bhqk,bkd->bhqd", p, v)
        return (lambda x, *d: x.permute(*d))(o, 0, 2, 1, 3).reshape(B, S, H * Dh) @ wo

    def _B_ref(x, w1, b1, w2, b2):
        y = _layernorm(x, axis=-1)
        h = _gelu(torch.einsum("bsd,df->bsf", y, w1) + b1)
        return torch.einsum("bsf,fd->bsd", h, w2) + b2

    x = A_x
    h = x + _A_ref(_layernorm(x, axis=-1), A_wq, A_wk, A_wv, A_wo)
    h2 = h + _B_ref(_layernorm(h, axis=-1), B_w1, B_b1, B_w2, B_b2)
    return h2
```

```python
import re

REG_RE = re.compile(r'^(-|abs\()?([vas])(?:(\d+)|\[(\d+):(\d+)\])\)?$')

def parse_reg(tok):
    tok = tok.strip()
    if tok in ('vcc', 'vcc_lo', 'vcc_hi'): return [('s', 106), ('s', 107)]
    if tok in ('exec', 'exec_lo', 'exec_hi'): return [('s', 126), ('s', 127)]
    if tok == 'm0': return [('s', 124)]
    m = REG_RE.match(tok)
    if not m: return []
    k = m.group(2)
    if m.group(3) is not None: return [(k, int(m.group(3)))]
    return [(k, i) for i in range(int(m.group(4)), int(m.group(5)) + 1)]

TRANS = ('v_exp_f32', 'v_log_f32', 'v_rcp_f32', 'v_rsq_f32', 'v_sqrt_f32', 'v_sin_f32', 'v_cos_f32', 'v_rcp_iflag_f32', 'v_exp_f16', 'v_rcp_f16')
def mfma_passes(op):
    if '32x32x4_2b' in op: return 16
    if '32x32x16' in op or '32x32x8' in op: return 8
    if '16x16x32' in op or '16x16x16' in op: return 4
    raise ValueError(op)

class I:
    __slots__ = ('text', 'op', 'w', 'r', 'kind', 'passes', 'srcc', 'srcab', 'states', 'dpp', 'stdata', 'ldsdma', 'dot')
    def __init__(self, text):
        self.text = text
        t = text.split(';')[0].strip()
        parts = t.split(None, 1)
        self.op = op = parts[0]
        rest = parts[1] if len(parts) > 1 else ''
        toks = [x.strip() for x in rest.split(',')] if rest else []
        mods = ''
        if toks:
            sp = toks[-1].split(None, 1)
            toks[-1] = sp[0]
            mods = sp[1] if len(sp) > 1 else ''
        if '[' in rest and ('op_sel' in rest or 'quad_perm' in rest or 'neg_' in rest):
            cut = min([rest.find(k) for k in ('op_sel', 'quad_perm', 'neg_lo', 'neg_hi') if k in rest])
            head = rest[:cut].strip(); mods = rest[cut:]
            toks = [x.strip() for x in head.split(',')]
            sp = toks[-1].split(None, 1); toks[-1] = sp[0]
            if len(sp) > 1: mods = sp[1] + ' ' + mods
        regs = [parse_reg(x) for x in toks]
        self.w = set(); self.r = set(); self.passes = 0; self.srcc = set(); self.srcab = set()
        self.states = 1; self.dpp = ('_dpp' in op) or ('row_' in mods) or ('quad_perm' in mods)
        self.stdata = set(); self.ldsdma = False; self.dot = False
        flat = lambda l: set(x for y in l for x in y)
        if op == 's_nop':
            self.kind = 'nop'; self.states = int(toks[0], 0) + 1
        elif op.startswith('v_mfma'):
            self.kind = 'mfma'; self.passes = mfma_passes(op)
            self.w = set(regs[0]); self.srcab = set(regs[1]) | set(regs[2]); self.srcc = set(regs[3]); self.r = self.srcab | self.srcc
        elif op.startswith('v_'):
            self.kind = 'trans' if op.replace('_e32', '').replace('_e64', '') in TRANS else 'valu'
            self.dot = op.startswith('v_dot')
            if op.startswith('v_cmp'):
                self.w = set(regs[0]); self.r = flat(regs[1:])
                if op.startswith('v_cmpx'): self.w |= {('s', 126), ('s', 127)}
            elif op.startswith('v_permlane') and 'swap' in op:
                self.w = set(regs[0]) | set(regs[1]); self.r = set(self.w)
            elif '_co_' in op:
                self.w = set(regs[0]) | set(regs[1]); self.r = flat(regs[2:])
            else:
                self.w = set(regs[0]); self.r = flat(regs[1:])
                if op.startswith(('v_fmac', 'v_dot2c', 'v_pk_fmac', 'v_writelane')) or 'UNUSED_PRESERVE' in mods or self.dpp:
                    self.r |= set(regs[0])
                if op.startswith('v_cndmask') and len(toks) == 3: self.r |= {('s', 106), ('s', 107)}
        elif op.startswith(('buffer_', 'global_', 'flat_')):
            self.kind = 'vmem'
            if op in ('buffer_wbl2', 'buffer_inv'): pass
            elif ' lds' in (' ' + mods) or '_lds_' in op:
                self.ldsdma = True; self.r = flat(regs) | {('s', 124)}
            elif 'store' in op:
                self.r = flat(regs)
                d = regs[0] if op.startswith('buffer_') else regs[1]
                if len(d) >= 3: self.stdata = set(d)
            elif 'atomic' in op:
                self.r = flat(regs)
                if 'sc0' in mods: self.w = set(regs[0])
            else:
                self.w = set(regs[0]); self.r = flat(regs[1:])
        elif op.startswith('ds_'):
            self.kind = 'ds'
            if op.startswith(('ds_read', 'ds_bpermute', 'ds_permute', 'ds_swizzle')) or '_rtn' in op:
                self.w = set(regs[0]); self.r = flat(regs[1:])
            else: self.r = flat(regs)
        elif op.startswith('s_'):
            self.kind = 'salu'
            if op.startswith(('s_cmp', 's_cbranch', 's_branch', 's_waitcnt', 's_barrier', 's_endpgm', 's_setprio', 's_sleep', 's_bitcmp')):
                self.r = flat(regs)
            elif op.startswith(('s_load', 's_buffer_load', 's_memtime', 's_memrealtime')):
                self.kind = 'smem'; self.w = set(regs[0]); self.r = flat(regs[1:])
            else:
                self.w = set(regs[0]); self.r = flat(regs[1:])
                if 'saveexec' in op: self.w |= {('s', 126), ('s', 127)}
        else:
            raise ValueError('unknown op ' + text)

def vec(s): return set(x for x in s if x[0] in 'va')
def sca(s): return set(x for x in s if x[0] == 's')
EXEC = {('s', 126), ('s', 127)}

def need(p, c):
    n = 0
    isvalu = lambda x: x.kind in ('valu', 'trans')
    if isvalu(p):
        pw = vec(p.w); ps = sca(p.w)
        if c.kind == 'mfma' and pw & c.r: n = max(n, 3 if p.dot else 2)
        if p.dot and isvalu(c) and (pw & (c.r | c.w)):
            n = max(n, 0 if (c.op == p.op and c.w == p.w and chain_only(p, c)) else 3)
        if p.dot and c.kind in ('vmem', 'ds') and pw & c.r: n = max(n, 3)
        if p.kind == 'trans' and c.kind == 'valu' and pw & c.r: n = max(n, 1)
        if p.kind == 'trans' and c.kind == 'mfma' and pw & c.r: n = max(n, 2)
        if isvalu(c) and c.dpp and pw & c.r: n = max(n, 2)
        if c.op.startswith('v_permlane') and pw & c.r: n = max(n, 2)
        if c.op.startswith(('v_readlane', 'v_readfirstlane')) and pw & c.r: n = max(n, 1)
        if ps:
            if c.kind == 'vmem' and ps & c.r: n = max(n, 5)
            if isvalu(c) and ps & c.r: n = max(n, 4 if c.op.startswith(('v_readlane', 'v_writelane')) else 2)
            if c.kind in ('salu', 'smem') and ps & c.r: n = max(n, 1)
            if ps & EXEC:
                if c.kind == 'mfma': n = max(n, 4)
                if isvalu(c) and c.dpp: n = max(n, 5)
                if c.op.startswith(('v_readlane', 'v_readfirstlane', 'v_writelane', 'v_permlane')): n = max(n, 4)
        if 'sdwa' in p.op or 'op_sel' in p.text:
            if isvalu(c) and pw & (c.r | c.w): n = max(n, 1)
    if p.kind == 'mfma':
        P = p.passes
        big = {2: 5, 4: 8, 8: 12, 16: 20}[P]
        ovl = {2: 4, 4: 6, 8: 10, 16: 18}[P]
        if c.kind == 'mfma':
            if p.w & c.srcab: n = max(n, big)
            if p.w & c.srcc:
                if not (p.w == c.srcc and c.passes == P): n = max(n, ovl)
                elif P == 2: n = max(n, 2)
            elif p.w & c.w: n = max(n, ovl)
        elif isvalu(c) or c.kind in ('vmem', 'ds'):
            if p.w & (c.r | c.w): n = max(n, big)
        if isvalu(c) and p.srcc & c.w: n = max(n, {2: 1, 4: 3, 8: 7, 16: 15}[P])
    if p.kind == 'salu' and ('s', 124) in p.w and c.ldsdma: n = max(n, 1)
    if p.stdata and (p.stdata & c.w): n = max(n, 2 if isvalu(c) else 1)
    return n

def chain_only(p, c):
    t = c.text.split(';')[0].split(None, 1)[1].split(',')
    ab = set(parse_reg(t[1])) | set(parse_reg(t[2].split()[0]))
    return not (ab & p.w)

class Asm:
    def __init__(self):
        self.items = []
    def __call__(self, text):
        for line in text.split('\n'):
            s = line.strip()
            if not s: continue
            if s.startswith(';') or s.startswith('.') or s.endswith(':'):
                self.items.append(s)
            else:
                self.items.append(I(s))
    def fix(self, window=24):
        out = []
        hist = []
        for it in self.items:
            if isinstance(it, str):
                out.append(it); continue
            dist = 0; req = 0
            for p in reversed(hist):
                n = need(p, it)
                if n > dist: req = max(req, n - dist)
                dist += p.states
                if dist >= window: break
            while req > 0:
                k = min(req, 16)
                nop = I(f's_nop {k-1}')
                out.append(nop); hist.append(nop); req -= k
            out.append(it); hist.append(it)
            if it.op in ('s_branch', 's_endpgm'): hist = []
            if len(hist) > 64: hist = hist[-32:]
        self.items = out
        self.check_branches(window)
    def check_branches(self, window):
        labels = {it[:-1]: i for i, it in enumerate(self.items) if isinstance(it, str) and it.endswith(':')}
        for i, it in enumerate(self.items):
            if isinstance(it, I) and it.op.startswith(('s_cbranch', 's_branch')):
                tgt = it.text.split(';')[0].split()[1]
                j = labels[tgt]
                pre = [x for x in self.items[max(0, i-40):i+1] if isinstance(x, I)]
                post = [x for x in self.items[j:j+40] if isinstance(x, I)]
                d0 = 0
                for c in post:
                    dist = d0
                    for p in reversed(pre):
                        n = need(p, c)
                        if n > dist: raise RuntimeError(f'hazard across branch {it.text}: {p.text} -> {c.text} needs {n} has {dist}')
                        dist += p.states
                        if dist >= window: break
                    d0 += c.states
                    if d0 >= window or c.op in ('s_branch', 's_endpgm'): break
    def text(self):
        o = []
        for it in self.items:
            if isinstance(it, str): o.append(it if (it.endswith(':') or it.startswith('.')) else '    ' + it)
            else: o.append('    ' + it.text)
        return '\n'.join(o) + '\n'
    def maxreg(self, kind):
        m = -1
        for it in self.items:
            if isinstance(it, I):
                for k, n in (it.w | it.r):
                    if k == kind and not (k == 's' and n >= 102): m = max(m, n)
        return m
```

```python
import sys, math, struct
from asmlib import Asm

NAME = "sequential_preLN__grouped_kv_mqa__mixer_channel_mlp__prompt"
def f2u(x): return struct.unpack('<I', struct.pack('<f', x))[0]
def hx(x): return f"0x{x & 0xffffffff:08x}"

REC = 4864
WS_KV = 0
WS_KMAX = 0x28000
WS_QM = 0x100000
WS_QL = 0x300000
WS_O = 0x400000
WS_H = 0x700000
WS_ST = 0xA00000
WS_PART = 0x1000000
WS_SIZE = 0x10000000
XBYTES = 2048 * 576 * 2
CS = math.log2(math.e) / math.sqrt(18.0)
C1 = -2.0 * math.sqrt(2.0 / math.pi) * math.log2(math.e)
C2 = C1 * 0.044715
ALPHA = -((-C2) ** (1.0 / 3.0))
GA = C1 / ALPHA

def srd(a, d, p, size):
    a(f"s_mov_b32 s{d}, s{p}\ns_mov_b32 s{d+1}, s{p+1}\ns_mov_b32 s{d+2}, {hx(size)}\ns_mov_b32 s{d+3}, 0x00020000")

def vr(b, n): return f"v[{b}:{b+n-1}]" if n > 1 else f"v{b}"
def ar(b, n): return f"a[{b}:{b+n-1}]" if n > 1 else f"a{b}"

def slot_of(d):
    return 12 + d if d < 4 else (d - 4 if d < 12 else (d + 4 if d < 16 else d - 8))

def k1():
    a = Asm()
    XN, XS, WQL = 0, 1168, 74752
    a("s_cmp_ge_u32 s2, 256\ns_cbranch_scc1 K1_END")
    a("s_load_dwordx8 s[4:11], s[0:1], 0\ns_load_dwordx2 s[12:13], s[0:1], 96")
    a("v_and_b32 v1, 63, v0\nv_lshrrev_b32 v2, 6, v0")
    a("v_readfirstlane_b32 s34, v2")
    a("s_lshr_b32 s32, s2, 3\ns_and_b32 s33, s2, 7")
    a("v_mul_u32_u24 v3, 7282, v0\nv_lshrrev_b32 v3, 16, v3")
    a("v_mul_u32_u24 v4, 9, v3\nv_sub_u32 v4, v0, v4")
    a("v_and_b32 v5, 48, v3\nv_and_b32 v6, 3, v3\nv_lshlrev_b32 v6, 2, v6\nv_bfe_u32 v7, v3, 2, 2")
    a("v_add3_u32 v5, v5, v6, v7\nv_mul_u32_u24 v5, 1152, v5\nv_lshl_add_u32 v8, v4, 4, v5")
    a("s_waitcnt lgkmcnt(0)")
    srd(a, 16, 4, XBYTES); srd(a, 20, 6, 576*576*2); srd(a, 28, 12, WS_SIZE)
    a("s_cmp_ge_u32 s33, 4\ns_cselect_b32 s24, s10, s8\ns_cselect_b32 s25, s11, s9")
    a(f"s_mov_b32 s26, {576*18*2}\ns_mov_b32 s27, 0x00020000")
    a("s_mul_i32 s35, s32, 73728")
    a("s_mul_i32 s36, s33, 144")
    a(f"s_lshl_b32 s37, s34, 10\ns_add_u32 s37, s37, {WQL}")
    a("s_cmp_eq_u32 s34, 8\ns_cbranch_scc1 K1_KV")
    a("v_lshrrev_b32 v9, 3, v0\nv_and_b32 v10, 7, v0\nv_lshlrev_b32 v10, 4, v10")
    a("v_mul_u32_u24 v11, 1152, v9\nv_add_u32 v11, v11, v10")
    X0 = 32
    for i in range(9):
        a(f"buffer_load_dwordx4 {vr(X0+4*i,4)}, v11, s[16:19], s35 offen offset:{128*i}")
    def wq_dma():
        for b in range(9):
            a(f"s_add_u32 m0, s37, {b*9216}\ns_add_u32 s38, s36, {b*73728}")
            a("buffer_load_dwordx4 v8, s[20:23], s38 offen lds")
    wq_dma()
    a(f"v_mul_u32_u24 v12, {XS}, v9\nv_add_u32 v12, v12, v10")
    a("s_lshr_b32 s39, s34, 2\ns_lshl_b32 s40, s39, 5\ns_and_b32 s41, s34, 3")
    a(f"v_and_b32 v13, 31, v1\nv_add_u32 v13, s40, v13\nv_mul_u32_u24 v13, {XS}, v13\nv_lshrrev_b32 v14, 5, v1\nv_lshl_add_u32 v13, v14, 4, v13")
    a("v_bfe_u32 v15, v1, 2, 2\nv_lshlrev_b32 v15, 2, v15\nv_lshl_add_u32 v15, v14, 1, v15\nv_mul_u32_u24 v15, 144, v15")
    a("v_bfe_u32 v16, v1, 4, 1\nv_and_b32 v17, 3, v1\nv_lshl_add_u32 v16, v16, 2, v17")
    a("s_and_b32 s42, s41, 1")
    a("v_add_u32 v16, s42, v16\nv_lshrrev_b32 v16, s42, v16")
    a(f"s_mul_i32 s43, s41, 36\ns_lshl_b32 s44, s42, 2\ns_sub_u32 s43, s43, s44\ns_add_u32 s43, s43, {WQL}")
    a("v_lshl_add_u32 v15, v16, 3, v15\nv_add_u32 v15, s43, v15")
    a(f"v_add_u32 v18, {18*2304}, v15")
    a("s_mov_b32 s45, 0x3f803f80")
    for i in range(8): a(f"v_mov_b32 v{20+i}, 0")
    a("s_waitcnt vmcnt(9)")
    for i in range(36):
        a(f"v_dot2_f32_bf16 v{20+i%4}, v{X0+i}, s45, v{20+i%4}")
        a(f"v_dot2_f32_bf16 v{24+i%4}, v{X0+i}, v{X0+i}, v{24+i%4}")
    a("v_add_f32 v20, v20, v21\nv_add_f32 v22, v22, v23\nv_add_f32 v24, v24, v25\nv_add_f32 v26, v26, v27")
    a("v_add_f32 v20, v20, v22\nv_add_f32 v24, v24, v26")
    for dp in ("quad_perm:[1,0,3,2]", "quad_perm:[2,3,0,1]", "row_half_mirror"):
        a(f"v_add_f32_dpp v20, v20, v20 {dp} row_mask:0xf bank_mask:0xf")
        a(f"v_add_f32_dpp v24, v24, v24 {dp} row_mask:0xf bank_mask:0xf")
    a(f"v_mul_f32 v20, {hx(f2u(1/576))}, v20\nv_mul_f32 v24, {hx(f2u(1/576))}, v24")
    a("v_fma_f32 v24, -v20, v20, v24\nv_max_f32 v24, 0, v24")
    a(f"v_add_f32 v24, {hx(f2u(1e-5))}, v24\nv_rsq_f32 v24, v24")
    a("v_mul_f32 v20, v20, v24\nv_sub_f32 v20, 0, v20")
    for i in range(0, 36, 2):
        for e in (0, 1):
            a(f"v_lshlrev_b32 v{70+2*e}, 16, v{X0+i+e}\nv_and_b32 v{71+2*e}, 0xffff0000, v{X0+i+e}")
        for e in range(4): a(f"v_fma_f32 v{70+e}, v{70+e}, v24, v20")
        for e in (0, 1): a(f"v_cvt_pk_bf16_f32 v{X0+i+e}, v{70+2*e}, v{71+2*e}")
    a("s_barrier")
    for i in range(9): a(f"ds_write_b128 v12, {vr(X0+4*i,4)} offset:{128*i}")
    a("s_waitcnt vmcnt(0) lgkmcnt(0)\ns_barrier")
    A0, B0, ACC, D = 80, 96, 112, 4
    def rd(s):
        base, off = (15, s*2304) if s < 18 else (18, (s-18)*2304)
        a(f"ds_read_b128 {vr(B0+4*(s%D),4)}, v13 offset:{32*s}")
        a(f"ds_read_b64_tr_b16 {vr(A0+4*(s%D),2)}, v{base} offset:{off}")
        a(f"ds_read_b64_tr_b16 {vr(A0+4*(s%D)+2,2)}, v{base} offset:{off+144}")
    for s in range(D): rd(s)
    for s in range(36):
        left = min(D-1, 35-s)
        a(f"s_waitcnt lgkmcnt({3*left})")
        a(f"v_mfma_f32_32x32x16_bf16 {vr(ACC,16)}, {vr(A0+4*(s%D),4)}, {vr(B0+4*(s%D),4)}, {'0' if s == 0 else vr(ACC,16)}")
        if s + D < 36: rd(s + D)
    a(f"s_mov_b32 s46, {hx(f2u(CS))}")
    a("s_lshl_b32 s47, s32, 5\ns_lshl_b32 s48, s33, 2\ns_add_u32 s47, s47, s48\ns_add_u32 s47, s47, s41\ns_lshl_b32 s47, s47, 1\ns_add_u32 s47, s47, s39")
    a(f"s_lshl_b32 s48, s47, 10\ns_add_u32 s48, s48, {WS_QM}\ns_lshl_b32 s49, s47, 7\ns_add_u32 s49, s49, {WS_QL}")
    a("v_lshlrev_b32 v2, 4, v1\nv_and_b32 v3, 31, v1\nv_lshlrev_b32 v3, 2, v3")
    for i in range(16): a(f"v_mul_f32 v{ACC+i}, s46, v{ACC+i}")
    a("s_cmp_eq_u32 s42, 1\ns_cbranch_scc1 K1_ODD")
    for i in range(4): a(f"v_cvt_pk_bf16_f32 v{20+i}, v{ACC+2*i}, v{ACC+2*i+1}")
    a(f"v_cvt_pk_bf16_f32 v24, v{ACC+8}, v{ACC+9}")
    a("buffer_store_dwordx4 v[20:23], v2, s[28:31], s48 offen")
    a("s_mov_b32 exec_hi, 0")
    a("buffer_store_dword v24, v3, s[28:31], s49 offen")
    a("s_endpgm")
    a("K1_ODD:")
    for i, r in enumerate((2, 4, 10, 12)): a(f"v_cvt_pk_bf16_f32 v{20+i}, v{ACC+r}, v{ACC+r+1}")
    a(f"v_cvt_pk_bf16_f32 v24, v{ACC+14}, v{ACC+15}")
    a("buffer_store_dwordx4 v[20:23], v2, s[28:31], s48 offen")
    a("s_mov_b32 exec_lo, 0")
    a("buffer_store_dword v24, v3, s[28:31], s49 offen")
    a("s_endpgm")
    a("K1_KV:")
    for m in range(3):
        a(f"v_add_u32 v9, {64*m}, v1\nv_mul_u32_u24 v10, 21846, v9\nv_lshrrev_b32 v10, 16, v10")
        a("v_mul_u32_u24 v11, 3, v10\nv_sub_u32 v11, v9, v11")
        a(f"v_mul_u32_u24 v10, 36, v10\nv_lshl_add_u32 v{12+m}, v11, 4, v10")
    for m in range(27):
        a(f"s_mov_b32 m0, {XN + 1024*m}\ns_mov_b32 s38, {(m//3)*64*36}")
        a(f"buffer_load_dwordx4 v{12+m%3}, s[24:27], s38 offen lds")
    wq_dma()
    a("v_lshrrev_b32 v2, 4, v1\nv_bfe_u32 v3, v1, 2, 2\nv_lshl_add_u32 v3, v2, 3, v3\nv_mul_u32_u24 v3, 48, v3\nv_and_b32 v4, 3, v1\nv_lshl_add_u32 v3, v4, 3, v3")
    a("s_and_b32 s39, s33, 3\ns_lshl_b32 s40, s39, 4")
    a(f"v_and_b32 v4, 15, v1\nv_add_u32 v5, s40, v4\nv_mul_u32_u24 v5, {XS}, v5\nv_lshl_add_u32 v5, v2, 4, v5")
    W0 = 24
    a("s_waitcnt vmcnt(9)")
    n = 0
    for s in range(18):
        for blk in range(2):
            for e in range(2):
                a(f"ds_read_b64_tr_b16 {vr(W0 + (s*2+blk)*4 + 2*e, 2)}, v3 offset:{(32*s + 4*e)*48 + 32*blk}")
                n += 1
                if n % 12 == 0: a("s_waitcnt lgkmcnt(4)")
    a("s_waitcnt lgkmcnt(0)\ns_barrier")
    a("s_waitcnt vmcnt(0)\ns_barrier")
    XB = 8
    for s in range(2): a(f"ds_read_b128 {vr(XB+4*s,4)}, v5 offset:{64*s}")
    a("s_cmp_ge_u32 s33, 4\ns_cbranch_scc1 K1_V")
    def kvloop(isV):
        for s in range(18):
            a(f"s_waitcnt lgkmcnt({1 if s < 17 else 0})")
            for blk in range(2):
                w = vr(W0 + (s*2+blk)*4, 4); x = vr(XB+4*(s%2), 4); d = vr(16+4*blk, 4)
                A, B = (x, w) if isV else (w, x)
                a(f"v_mfma_f32_16x16x32_bf16 {d}, {A}, {B}, {'0' if s == 0 else d}")
            if s + 2 < 18: a(f"ds_read_b128 {vr(XB+4*(s%2),4)}, v5 offset:{64*(s+2)}")
    kvloop(False)
    a(f"s_mul_i32 s41, s32, {REC}")
    a("s_lshr_b32 s42, s39, 1\ns_and_b32 s43, s39, 1\ns_lshl_b32 s43, s43, 4")
    a("v_add_u32 v6, s43, v4")
    a("v_and_b32 v7, 1, v2\nv_lshl_add_u32 v7, v7, 5, v6\nv_lshlrev_b32 v7, 4, v7\nv_lshrrev_b32 v8, 1, v2\nv_lshl_add_u32 v7, v8, 3, v7")
    a("s_lshl_b32 s44, s42, 10\ns_add_u32 s44, s44, s41")
    a("v_cvt_pk_bf16_f32 v8, v16, v17\nv_cvt_pk_bf16_f32 v9, v18, v19\nv_cvt_pk_bf16_f32 v10, v20, v21")
    a("buffer_store_dwordx2 v[8:9], v7, s[28:31], s44 offen")
    a("v_cmp_gt_u32 vcc, 16, v1\nv_cndmask_b32 v10, 0, v10, vcc")
    a("v_mov_b32 v11, 0\nv_dot2_f32_bf16 v11, v8, v8, v11\nv_dot2_f32_bf16 v11, v9, v9, v11\nv_dot2_f32_bf16 v11, v10, v10, v11")
    a("v_mov_b32 v12, v11\nv_permlane32_swap_b32 v11, v12\nv_add_f32 v11, v11, v12")
    a("v_mov_b32 v12, v11\nv_permlane16_swap_b32 v11, v12\nv_add_f32 v11, v11, v12")
    for dp in ("quad_perm:[1,0,3,2]", "quad_perm:[2,3,0,1]", "row_half_mirror", "row_mirror"):
        a(f"v_max_f32_dpp v11, v11, v11 {dp} row_mask:0xf bank_mask:0xf")
    a("s_lshl_b32 s45, s42, 7\ns_add_u32 s45, s45, s41\ns_add_u32 s45, s45, 2048")
    a("v_lshlrev_b32 v6, 2, v6\nv_mov_b32 v13, 0")
    a(f"s_lshl_b32 s46, s32, 2\ns_add_u32 s46, s46, s39\ns_lshl_b32 s46, s46, 2\ns_add_u32 s46, s46, {WS_KMAX}")
    a("s_mov_b64 exec, 0xffff")
    a("buffer_store_dword v10, v6, s[28:31], s45 offen")
    a("s_mov_b64 exec, 1")
    a("buffer_store_dword v11, v13, s[28:31], s46 offen")
    a("s_endpgm")
    a("K1_V:")
    kvloop(True)
    a(f"s_mul_i32 s41, s32, {REC}\ns_mul_i32 s42, s39, 640\ns_add_u32 s41, s41, s42\ns_add_u32 s41, s41, 2304")
    a("v_and_b32 v6, 1, v2\nv_mul_u32_u24 v6, 320, v6\nv_lshrrev_b32 v7, 1, v2\nv_lshl_add_u32 v6, v7, 3, v6")
    a("v_add_u32 v7, 4, v4\nv_subrev_u32 v8, 4, v4\nv_cmp_gt_u32 vcc, 12, v4\nv_cndmask_b32 v7, v7, v8, vcc")
    a("v_add_u32 v8, 12, v4\nv_cmp_gt_u32 vcc, 4, v4\nv_cndmask_b32 v7, v7, v8, vcc")
    a("v_lshl_add_u32 v7, v7, 4, v6")
    a("v_cvt_pk_bf16_f32 v8, v16, v17\nv_cvt_pk_bf16_f32 v9, v18, v19\nv_cvt_pk_bf16_f32 v10, v20, v21\nv_cvt_pk_bf16_f32 v11, v22, v23")
    a("buffer_store_dwordx2 v[8:9], v7, s[28:31], s41 offen")
    a("v_mov_b32 v12, 0x3f803f80\nv_cmp_eq_u32 vcc, 2, v4\nv_cndmask_b32 v10, v10, v12, vcc\nv_cndmask_b32 v11, v11, v12, vcc")
    a("v_cmp_ne_u32 vcc, 3, v4\nv_cndmask_b32 v10, 0, v10, vcc\nv_cndmask_b32 v11, 0, v11, vcc")
    a("v_add_u32 v13, 8, v4\nv_lshl_add_u32 v13, v13, 4, v6")
    a("s_mov_b32 exec_lo, 0x000f000f\ns_mov_b32 exec_hi, 0x000f000f")
    a("buffer_store_dwordx2 v[10:11], v13, s[28:31], s41 offen")
    a("K1_END:")
    a("s_endpgm")
    return a, dict(grid=256, block=576, lds=157696)

KERNELS = [("qkv_kernel", k1)]

def build(kernels, extra_launch=()):
    hdr = open(f"cdna_kernels/{NAME}.s.ref").read().split("; Override launch")[0]
    launches = ""; body = ""; desc = ""
    for name, fn in kernels:
        a, cfg = fn()
        a.fix()
        nv = a.maxreg('v') + 1; na = a.maxreg('a') + 1; ns = a.maxreg('s') + 1
        acc = (nv + 3) // 4 * 4
        tot = acc + na if na else nv
        launches += f"; @launch kernel={name} grid=({cfg['grid']},1,1) block=({cfg['block']},1,1) lds={cfg['lds']}\n"
        body += f".globl {name}\n.p2align 8\n.type {name},@function\n{name}:\n" + a.text()
        desc += f""".p2align 6
.amdhsa_kernel {name}
  .amdhsa_next_free_vgpr {tot}
  .amdhsa_next_free_sgpr {ns}
  .amdhsa_accum_offset {acc}
  .amdhsa_group_segment_fixed_size 0
  .amdhsa_kernarg_size 104
  .amdhsa_user_sgpr_count 2
  .amdhsa_user_sgpr_kernarg_segment_ptr 1
  .amdhsa_system_sgpr_workgroup_id_x 1
.end_amdhsa_kernel
"""
        print(f"{name}: vgpr {nv} agpr {na} sgpr {ns}", file=sys.stderr)
    return hdr + launches + '.amdgcn_target "amdgcn-amd-amdhsa--gfx950"\n.text\n' + body + '.section .rodata,"a"\n' + desc

if __name__ == "__main__":
    out = sys.argv[1] if len(sys.argv) > 1 else f"cdna_kernels/{NAME}.s"
    open(out, "w").write(build(KERNELS))
```

```python
from gen import *

def k2():
    a = Asm()
    FLAG = 32 * REC
    XM = FLAG + 64
    QM = [8, 12]; QL = [16, 18]; KM = [20, 24]; KL = 28; V0 = 32
    S = [48, 80]; P = [112, 128]; O = [144, 160]
    AK, AL, AV = (176, 177), (178, 179), (180, 181)
    a("s_cmp_ge_u32 s2, 256\ns_cbranch_scc1 K2_END")
    a("s_load_dwordx2 s[12:13], s[0:1], 96")
    a("v_and_b32 v1, 63, v0\nv_lshrrev_b32 v2, 6, v0")
    a("v_readfirstlane_b32 s34, v2")
    a("s_lshr_b32 s32, s2, 3\ns_and_b32 s33, s2, 7")
    a("v_lshlrev_b32 v2, 4, v1\nv_and_b32 v3, 31, v1\nv_lshlrev_b32 v4, 2, v3\nv_lshlrev_b32 v5, 3, v1")
    a("s_and_b32 s35, s34, 3\ns_lshr_b32 s36, s34, 2")
    a("s_lshl_b32 s37, s32, 5\ns_lshl_b32 s38, s33, 2\ns_add_u32 s37, s37, s38\ns_add_u32 s37, s37, s35")
    a(f"s_lshl_b32 s38, s37, 11\ns_add_u32 s38, s38, {WS_QM}\ns_lshl_b32 s39, s37, 8\ns_add_u32 s39, s39, {WS_QL}")
    a(f"s_mov_b32 s40, {WS_KMAX}")
    a(f"s_mul_i32 s41, s36, {16*REC}")
    a("s_lshl_b32 s42, s35, 10\ns_add_u32 s42, s42, s41")
    a("s_min_u32 s43, s35, 2\ns_lshl_b32 s43, s43, 10\ns_add_u32 s43, s43, s41")
    a("s_waitcnt lgkmcnt(0)")
    srd(a, 28, 12, WS_SIZE)
    for u in range(2):
        a(f"buffer_load_dwordx4 {vr(QM[u],4)}, v2, s[28:31], s38 offen offset:{1024*u}")
        a(f"buffer_load_dword v{QL[u]}, v4, s[28:31], s39 offen offset:{128*u}")
    a("buffer_load_dwordx2 v[6:7], v5, s[28:31], s40 offen")
    for q in range(4):
        for i in range(5):
            a(f"s_add_u32 m0, {'s42' if i < 4 else 's43'}, {q*4*REC + i*4096}")
            a("s_nop 0")
            a("buffer_load_dwordx4 v2, s[28:31], m0 offen lds")
    a(f"v_add_u32 v{AK[0]}, s41, v2\nv_add_u32 v{AK[1]}, {8*REC}, v{AK[0]}")
    a(f"v_lshlrev_b32 v{AL[0]}, 2, v1\nv_add_u32 v{AL[0]}, s41, v{AL[0]}\nv_add_u32 v{AL[0]}, 2048, v{AL[0]}\nv_add_u32 v{AL[1]}, {8*REC}, v{AL[0]}")
    a("v_mov_b32 v40, 11\nv_mov_b32 v41, 10")
    a("v_and_b32 v42, 27, v3\nv_cmp_eq_u32 vcc, 18, v42\nv_cndmask_b32 v40, v40, v41, vcc")
    a("v_subrev_u32 v41, 8, v3\nv_cmp_gt_u32 vcc, 18, v3\nv_cndmask_b32 v40, v40, v41, vcc")
    a("v_add_u32 v41, 4, v3\nv_cmp_gt_u32 vcc, 16, v3\nv_cndmask_b32 v40, v40, v41, vcc")
    a("v_subrev_u32 v41, 4, v3\nv_cmp_gt_u32 vcc, 12, v3\nv_cndmask_b32 v40, v40, v41, vcc")
    a("v_add_u32 v41, 12, v3\nv_cmp_gt_u32 vcc, 4, v3\nv_cndmask_b32 v40, v40, v41, vcc")
    a("v_lshrrev_b32 v41, 5, v1\nv_mul_u32_u24 v41, 320, v41\nv_lshl_add_u32 v40, v40, 4, v41")
    a(f"v_add_u32 v40, s41, v40\nv_add_u32 v{AV[0]}, 2304, v40\nv_add_u32 v{AV[1]}, {8*REC}, v{AV[0]}")
    a(f"v_mov_b32 v{KL+1}, 0x00003f80")
    for u in range(2):
        for i in range(16): a(f"v_mov_b32 v{O[u]+i}, 0")
    a("s_waitcnt vmcnt(20)")
    a("v_max_f32 v6, v6, v7")
    for dp in ("quad_perm:[1,0,3,2]", "quad_perm:[2,3,0,1]", "row_half_mirror", "row_mirror"):
        a(f"v_max_f32_dpp v6, v6, v6 {dp} row_mask:0xf bank_mask:0xf")
    a("v_mov_b32 v7, v6\nv_permlane16_swap_b32 v6, v7\nv_max_f32 v6, v6, v7")
    a("v_mov_b32 v7, v6\nv_permlane32_swap_b32 v6, v7\nv_max_f32 v6, v6, v7")
    a("s_mov_b64 s[44:45], 0")
    for u in range(2):
        t = 40 + 2*u
        a(f"v_mov_b32 v{t}, 0")
        for i in range(4): a(f"v_dot2_f32_bf16 v{t}, v{QM[u]+i}, v{QM[u]+i}, v{t}")
        a(f"v_mov_b32 v{t+1}, v{t}\nv_permlane32_swap_b32 v{t}, v{t+1}\nv_add_f32 v{t}, v{t}, v{t+1}")
        a(f"v_dot2_f32_bf16 v{t}, v{QL[u]}, v{QL[u]}, v{t}")
        a(f"v_mul_f32 v{t}, v{t}, v6\nv_sqrt_f32 v{t}, v{t}\nv_mul_f32 v{t}, {hx(f2u(1.01))}, v{t}")
        a(f"v_cmp_nge_f32 vcc, {hx(f2u(40.0))}, v{t}\ns_or_b64 s[44:45], s[44:45], vcc")
        a(f"v_add_u32 v{t}, 0xffff, v{t}\nv_lshrrev_b32 v{t}, 16, v{t}\nv_or_b32 v{QL[u]+1}, 0x8000, v{t}")
    a("s_or_b32 s44, s44, s45")
    a(f"s_lshl_b32 s46, s34, 2\ns_add_u32 s46, s46, {FLAG}\nv_mov_b32 v40, s46\nv_mov_b32 v41, s44\nds_write_b32 v40, v41")
    a("s_waitcnt vmcnt(15) lgkmcnt(0)\ns_barrier")
    a(f"v_and_b32 v40, 7, v1\nv_lshlrev_b32 v40, 2, v40\nds_read_b32 v41, v40 offset:0" if False else f"v_and_b32 v40, 7, v1\nv_lshlrev_b32 v40, 2, v40\nv_add_u32 v40, {FLAG}, v40\nds_read_b32 v41, v40")
    def off(i): return (i % 8) * REC
    def ldKl(i): return f"ds_read_b32 v{KL}, v{AL[i//8]} offset:{off(i)}"
    def ldKm(i, t): return f"ds_read_b128 {vr(KM[t],4)}, v{AK[i//8]} offset:{off(i)+1024*t}"
    def ldV(i, f): return f"ds_read_b128 {vr(V0+4*f,4)}, v{AV[i//8]} offset:{off(i)+640*f}"
    def m2b(u): return f"v_mfma_f32_32x32x4_2b_bf16 {vr(S[u],32)}, {vr(KL,2)}, {vr(QL[u],2)}, 0"
    def mqk(u, t): return f"v_mfma_f32_32x32x16_bf16 {vr(S[u]+16*t,16)}, {vr(KM[t],4)}, {vr(QM[u],4)}, {vr(S[u]+16*t,16)}"
    def mpv(u, f): return f"v_mfma_f32_32x32x16_bf16 {vr(O[u],16)}, {vr(V0+4*f,4)}, {vr(P[u]+4*f,4)}, {vr(O[u],16)}"
    a(ldKl(0)); a(ldKm(0, 0)); a(ldKm(0, 1))
    a("s_waitcnt lgkmcnt(3)")
    a("v_cmp_ne_u32 vcc, 0, v41\ns_cbranch_vccnz K2_SLOW")
    a("s_waitcnt lgkmcnt(0)")
    a(m2b(0)); a(mqk(0, 0)); a(mqk(0, 1))
    POS = [2, 12, 18, 24, 30, 36, 42]
    carry = []
    def phase(u, ms):
        nonlocal carry
        val = []
        for p in range(16):
            val.append(f"v_exp_f32 v{S[u]+2*p}, v{S[u]+2*p}")
            val.extend(carry); carry = []
            val.append(f"v_exp_f32 v{S[u]+2*p+1}, v{S[u]+2*p+1}")
            carry = [f"v_cvt_pk_bf16_f32 v{P[u]+p}, v{S[u]+2*p}, v{S[u]+2*p+1}"]
        k = 0
        for n, v in enumerate(val):
            if k < 7 and n == POS[k]:
                for x in (ms[k] or []): a(x)
                k += 1
            a(v)
    for i in range(16):
        if i % 4 == 3 and i < 15:
            a(f"s_waitcnt vmcnt({10 - 5*(i//4)})\ns_barrier")
        nx = i + 1 < 16
        pv = (lambda f: [mpv(1, f)]) if i > 0 else (lambda f: [])
        nl = 3 if nx else 1
        phase(0, [[m2b(1)] + ([ldKl(i+1)] if nx else []),
                  pv(0) + [ldV(i, 0)],
                  pv(1) + [ldV(i, 1)],
                  [mqk(1, 0)] + ([ldKm(i+1, 0)] if nx else []),
                  [mqk(1, 1)] + ([ldKm(i+1, 1)] if nx else []),
                  pv(2) + [ldV(i, 2)],
                  pv(3) + [f"s_waitcnt lgkmcnt({nl})", ldV(i, 3)]])
        phase(1, [[m2b(0)] if nx else None,
                  [mpv(0, 0)],
                  [mpv(0, 1), "s_waitcnt lgkmcnt(0)"],
                  [mqk(0, 0)] if nx else None,
                  [mqk(0, 1)] if nx else None,
                  [mpv(0, 2)],
                  [mpv(0, 3)]])
    for x in carry: a(x)
    carry = []
    for f in range(4): a(mpv(1, f))
    a("K2_EPI:")
    a("s_nop 7\ns_nop 7")
    a("s_barrier")
    a("s_mul_i32 s46, s34, 3072\nv_add_u32 v40, s46, v2")
    a("s_xor_b32 s47, s34, 4\ns_mul_i32 s47, s47, 3072\nv_add_u32 v41, s47, v2")
    a("s_cmp_eq_u32 s36, 0\ns_cbranch_scc1 K2_E0")
    for i in range(3): a(f"ds_write_b128 v40, {vr(O[0]+4*i,4)} offset:{1024*i}")
    for i in range(12): a(f"v_mov_b32 v{O[0]+i}, v{O[1]+i}")
    a("s_branch K2_E1")
    a("K2_E0:")
    for i in range(3): a(f"ds_write_b128 v40, {vr(O[1]+4*i,4)} offset:{1024*i}")
    a("K2_E1:")
    a("s_waitcnt lgkmcnt(0)\ns_barrier")
    for i in range(3): a(f"ds_read_b128 {vr(48+4*i,4)}, v41 offset:{1024*i}")
    a(f"s_lshl_b32 s46, s32, 1\ns_add_u32 s46, s46, s36\ns_mul_i32 s46, s46, 36864\ns_add_u32 s46, s46, {WS_O}")
    a("s_lshl_b32 s47, s33, 2\ns_add_u32 s47, s47, s35\ns_lshl_b32 s47, s47, 10\ns_add_u32 s47, s47, s46")
    a("s_lshl_b32 s48, s33, 9\ns_lshl_b32 s49, s35, 2\ns_add_u32 s48, s48, s49\ns_add_u32 s48, s48, s46\ns_add_u32 s48, s48, 32768")
    a("s_waitcnt lgkmcnt(0)")
    for i in range(11): a(f"v_add_f32 v{48+i}, v{48+i}, v{O[0]+i}")
    a("v_rcp_f32 v58, v58")
    for i in range(10): a(f"v_mul_f32 v{48+i}, v{48+i}, v58")
    for i in range(5): a(f"v_cvt_pk_bf16_f32 v{60+i}, v{48+2*i}, v{49+2*i}")
    a("buffer_store_dwordx4 v[60:63], v2, s[28:31], s47 offen")
    a("s_mov_b32 exec_hi, 0")
    a("buffer_store_dword v64, v2, s[28:31], s48 offen")
    a("K2_END:")
    a("s_endpgm")
    a("K2_SLOW:")
    a("s_waitcnt vmcnt(0) lgkmcnt(0)\ns_barrier")
    M = [44, 45]
    a(f"v_mov_b32 v{QL[0]+1}, 0\nv_mov_b32 v{QL[1]+1}, 0\nv_mov_b32 v{M[0]}, 0xff800000\nv_mov_b32 v{M[1]}, 0xff800000")
    a(f"v_mov_b32 v{AK[1]}, v{AK[0]}\nv_mov_b32 v{AL[1]}, v{AL[0]}")
    a("s_mov_b32 s46, 16")
    a("K2_S1:")
    a(ldKl(8)); a(ldKm(8, 0)); a(ldKm(8, 1))
    a("s_waitcnt lgkmcnt(0)")
    for u in range(2): a(m2b(u))
    for u in range(2): a(mqk(u, 0)); a(mqk(u, 1))
    for u in range(2):
        for p in range(16): a(f"v_max3_f32 v{M[u]}, v{S[u]+2*p}, v{S[u]+2*p+1}, v{M[u]}")
    a(f"v_add_u32 v{AK[1]}, {REC}, v{AK[1]}\nv_add_u32 v{AL[1]}, {REC}, v{AL[1]}")
    a("s_sub_u32 s46, s46, 1\ns_cmp_lg_u32 s46, 0\ns_cbranch_scc1 K2_S1")
    for u in range(2):
        a(f"v_mov_b32 v46, v{M[u]}\nv_permlane32_swap_b32 v{M[u]}, v46\nv_max_f32 v{M[u]}, v{M[u]}, v46")
    a(f"s_lshl_b32 s46, s34, 9\ns_add_u32 s46, s46, {XM}\nv_add_u32 v40, s46, v5")
    a(f"s_xor_b32 s47, s34, 4\ns_lshl_b32 s47, s47, 9\ns_add_u32 s47, s47, {XM}\nv_add_u32 v41, s47, v5")
    a(f"ds_write_b64 v40, {vr(M[0],2)}\ns_waitcnt lgkmcnt(0)\ns_barrier\nds_read_b64 v[46:47], v41\ns_waitcnt lgkmcnt(0)")
    a(f"v_max_f32 v6, v{M[0]}, v46\nv_max_f32 v7, v{M[1]}, v47")
    a("s_mov_b32 s46, 16")
    a("K2_S2:")
    a(ldKl(0)); a(ldKm(0, 0)); a(ldKm(0, 1))
    for f in range(4): a(ldV(0, f))
    a("s_waitcnt lgkmcnt(0)")
    for u in range(2): a(m2b(u))
    for u in range(2): a(mqk(u, 0)); a(mqk(u, 1))
    for u in range(2):
        for r in range(32): a(f"v_sub_f32 v{S[u]+r}, v{S[u]+r}, v{6+u}")
        for r in range(32): a(f"v_exp_f32 v{S[u]+r}, v{S[u]+r}")
        for p in range(16): a(f"v_cvt_pk_bf16_f32 v{P[u]+p}, v{S[u]+2*p}, v{S[u]+2*p+1}")
        for f in range(4): a(mpv(u, f))
    a(f"v_add_u32 v{AK[0]}, {REC}, v{AK[0]}\nv_add_u32 v{AL[0]}, {REC}, v{AL[0]}\nv_add_u32 v{AV[0]}, {REC}, v{AV[0]}")
    a("s_nop 7\ns_nop 7")
    a("s_sub_u32 s46, s46, 1\ns_cmp_lg_u32 s46, 0\ns_cbranch_scc1 K2_S2")
    a("s_branch K2_EPI")
    return a, dict(grid=256, block=512, lds=XM + 4096)
```

```python
from gen import *

def k3():
    a = Asm()
    OL, WOL = 0, 73728
    a("s_cmp_ge_u32 s2, 256\ns_cbranch_scc1 K3_END")
    a("s_load_dwordx2 s[4:5], s[0:1], 0\ns_load_dwordx2 s[6:7], s[0:1], 32\ns_load_dwordx2 s[12:13], s[0:1], 96")
    a("v_and_b32 v1, 63, v0\nv_lshrrev_b32 v2, 6, v0")
    a("v_readfirstlane_b32 s34, v2")
    a("s_lshr_b32 s32, s2, 3\ns_and_b32 s33, s2, 7")
    a("v_mul_u32_u24 v3, 7282, v0\nv_lshrrev_b32 v3, 16, v3")
    a("v_mul_u32_u24 v4, 9, v3\nv_sub_u32 v4, v0, v4\nv_lshlrev_b32 v4, 4, v4")
    a("v_lshrrev_b32 v5, 4, v3\nv_bfe_u32 v6, v3, 2, 2\nv_bfe_u32 v7, v3, 1, 1\nv_and_b32 v8, 1, v3")
    a("v_mul_u32_u24 v9, 18, v5\nv_lshl_add_u32 v9, v8, 3, v9\nv_lshl_add_u32 v9, v7, 2, v9\nv_add_u32 v9, v9, v6")
    a("v_mul_u32_u24 v9, 1152, v9\nv_add_u32 v9, v9, v4")
    a("v_lshl_add_u32 v10, v8, 2, v6\nv_lshrrev_b32 v11, 1, v10\nv_and_b32 v10, 1, v10")
    a("v_lshl_add_u32 v11, v5, 3, v11\nv_lshl_add_u32 v11, v7, 2, v11\nv_mul_u32_u24 v11, 18, v11\nv_add3_u32 v10, v11, v10, 16")
    a("v_mul_u32_u24 v10, 1152, v10\nv_add_u32 v10, v10, v4")
    a("v_lshlrev_b32 v2, 4, v1")
    a("s_waitcnt lgkmcnt(0)")
    srd(a, 16, 4, XBYTES); srd(a, 20, 6, 576*576*2); srd(a, 28, 12, WS_SIZE)
    a("s_mul_i32 s36, s33, 144")
    a(f"s_lshl_b32 s37, s34, 10\ns_add_u32 s38, s37, {WOL}")
    a(f"s_mul_i32 s39, s32, 73728\ns_add_u32 s39, s39, s37\ns_add_u32 s39, s39, {WS_O}")
    def dmas():
        for b in range(9):
            a(f"s_add_u32 m0, s38, {b*9216}\ns_add_u32 s40, s36, {b*72*1152 if b < 8 else 0}")
            a(f"buffer_load_dwordx4 v{9 if b < 8 else 10}, s[20:23], s40 offen lds")
            if b < 8:
                a(f"s_add_u32 m0, s37, {OL + b*9216}\ns_add_u32 s40, s39, {b*9216}")
                a("buffer_load_dwordx4 v2, s[28:31], s40 offen lds")
    a("s_mov_b32 s45, 0x3f803f80\ns_mov_b32 s46, 0x00003f80\ns_mov_b32 s47, 0x3f800000")
    a("s_cmp_ge_u32 s34, 4\ns_cbranch_scc1 K3_B")
    a("s_lshr_b32 s41, s34, 1\ns_and_b32 s42, s34, 1")
    a("v_and_b32 v3, 31, v1\nv_lshrrev_b32 v4, 5, v1\nv_mul_u32_u24 v5, 1152, v3\nv_lshl_add_u32 v5, v4, 3, v5")
    a("s_lshl_b32 s43, s32, 1\ns_add_u32 s43, s43, s41")
    a("s_mul_i32 s44, s43, 36864\ns_add_u32 s48, s44, s36\ns_lshl_b32 s49, s42, 6\ns_add_u32 s48, s48, s49")
    for q in range(4): a(f"buffer_load_dwordx2 {vr(20+2*q,2)}, v5, s[16:19], s48 offen offset:{16*q}")
    dmas()
    a("v_bfe_u32 v15, v1, 2, 2\nv_lshlrev_b32 v15, 2, v15\nv_lshl_add_u32 v15, v4, 1, v15\nv_mul_u32_u24 v15, 144, v15")
    a("v_bfe_u32 v16, v1, 4, 1\nv_and_b32 v17, 3, v1\nv_lshl_add_u32 v16, v16, 2, v17\nv_lshl_add_u32 v15, v16, 3, v15")
    a(f"s_add_u32 s49, s49, {WOL}\nv_add_u32 v15, s49, v15\nv_add_u32 v18, {18*2304}, v15")
    a(f"s_mul_i32 s49, s41, 36864\nv_add_u32 v13, s49, v2")
    a("s_waitcnt vmcnt(0)\ns_barrier")
    A0, B0, ACC, D = 32, 48, 64, 4
    def rd(s):
        base, off = (15, s*2304) if s < 18 else (18, (s-18)*2304)
        a(f"ds_read_b128 {vr(B0+4*(s%D),4)}, v13 offset:{1024*s}")
        a(f"ds_read_b64_tr_b16 {vr(A0+4*(s%D),2)}, v{base} offset:{off}")
        a(f"ds_read_b64_tr_b16 {vr(A0+4*(s%D)+2,2)}, v{base} offset:{off+144}")
    for s in range(D): rd(s)
    for s in range(36):
        a(f"s_waitcnt lgkmcnt({3*min(D-1, 35-s)})")
        a(f"v_mfma_f32_32x32x16_bf16 {vr(ACC,16)}, {vr(A0+4*(s%D),4)}, {vr(B0+4*(s%D),4)}, {'0' if s == 0 else vr(ACC,16)}")
        if s + D < 36: rd(s + D)
    a(f"s_add_u32 s44, s44, {WS_H}")
    a("s_mul_i32 s48, s33, 9\ns_lshl_b32 s49, s42, 2\ns_add_u32 s48, s48, s49")
    a("v_mov_b32 v28, 0\nv_mov_b32 v29, 0")
    for i in range(8):
        a(f"v_dot2_f32_bf16 v{ACC+2*i}, v{20+i}, s46, v{ACC+2*i}")
        a(f"v_dot2_f32_bf16 v{ACC+2*i+1}, v{20+i}, s47, v{ACC+2*i+1}")
    for i in range(8): a(f"v_cvt_pk_bf16_f32 v{20+i}, v{ACC+2*i}, v{ACC+2*i+1}")
    for q in range(4):
        a(f"s_add_u32 s50, s48, {q}\ns_lshr_b32 s51, s50, 1\ns_lshl_b32 s51, s51, 10\ns_and_b32 s50, s50, 1\ns_lshl_b32 s50, s50, 3\ns_add_u32 s50, s50, s51\ns_add_u32 s50, s50, s44")
        a(f"buffer_store_dwordx2 {vr(20+2*q,2)}, v2, s[28:31], s50 offen")
    for i in range(8):
        a(f"v_dot2_f32_bf16 v28, v{20+i}, s45, v28")
        a(f"v_dot2_f32_bf16 v29, v{20+i}, v{20+i}, v29")
    a("v_mov_b32 v30, v28\nv_mov_b32 v31, v29\nv_permlane32_swap_b32 v28, v30\nv_permlane32_swap_b32 v29, v31\nv_add_f32 v28, v28, v30\nv_add_f32 v29, v29, v31")
    a(f"s_mul_i32 s50, s43, {32*192}\ns_mul_i32 s51, s33, 24\ns_add_u32 s50, s50, s51\ns_lshl_b32 s51, s42, 3\ns_add_u32 s50, s50, s51\ns_add_u32 s50, s50, {WS_ST}")
    a("v_mul_u32_u24 v3, 192, v3\ns_mov_b32 exec_hi, 0")
    a("buffer_store_dwordx2 v[28:29], v3, s[28:31], s50 offen")
    a("s_endpgm")
    a("K3_B:")
    a("s_cmp_eq_u32 s34, 8\ns_cbranch_scc0 K3_C")
    dmas()
    a("s_waitcnt vmcnt(0)\ns_barrier\ns_endpgm")
    a("K3_C:")
    a("s_sub_u32 s41, s34, 4")
    a("v_and_b32 v3, 15, v1\nv_lshrrev_b32 v4, 4, v1\nv_and_b32 v6, 1, v4\nv_lshrrev_b32 v7, 1, v4")
    a("v_mul_u32_u24 v5, 1152, v3\nv_lshl_add_u32 v5, v6, 3, v5")
    a("s_lshl_b32 s43, s32, 2\ns_add_u32 s43, s43, s41")
    a(f"s_mul_i32 s48, s43, {16*1152}\ns_add_u32 s48, s48, s36\ns_add_u32 s48, s48, 128")
    a("buffer_load_dwordx2 v[20:21], v5, s[16:19], s48 offen")
    dmas()
    a("v_bfe_u32 v15, v1, 2, 2\nv_lshlrev_b32 v15, 2, v15\nv_lshl_add_u32 v15, v6, 1, v15\nv_lshl_add_u32 v15, v7, 4, v15\nv_mul_u32_u24 v15, 144, v15")
    a(f"v_and_b32 v17, 3, v1\nv_lshl_add_u32 v15, v17, 3, v15\nv_add_u32 v15, {WOL+128}, v15\nv_add_u32 v18, {9*4608}, v15")
    a("s_lshr_b32 s42, s41, 1\ns_and_b32 s49, s41, 1\ns_lshl_b32 s49, s49, 4")
    a("v_lshl_add_u32 v12, v6, 5, v3\nv_add_u32 v12, s49, v12\nv_lshlrev_b32 v12, 4, v12")
    a("s_mul_i32 s50, s42, 36864\nv_lshl_add_u32 v13, v7, 10, v12\nv_add_u32 v13, s50, v13")
    a("s_waitcnt vmcnt(0)\ns_barrier")
    def rd2(s):
        base, off = (15, s*4608) if s < 9 else (18, (s-9)*4608)
        a(f"ds_read_b128 {vr(B0+4*(s%D),4)}, v13 offset:{2048*s}")
        a(f"ds_read_b64_tr_b16 {vr(A0+4*(s%D),2)}, v{base} offset:{off}")
        a(f"ds_read_b64_tr_b16 {vr(A0+4*(s%D)+2,2)}, v{base} offset:{off+144}")
    for s in range(D): rd2(s)
    for s in range(18):
        a(f"s_waitcnt lgkmcnt({3*min(D-1, 17-s)})")
        a(f"v_mfma_f32_16x16x32_bf16 {vr(ACC,4)}, {vr(A0+4*(s%D),4)}, {vr(B0+4*(s%D),4)}, {'0' if s == 0 else vr(ACC,4)}")
        if s + D < 18: rd2(s + D)
    a(f"s_lshl_b32 s44, s32, 1\ns_add_u32 s44, s44, s42\ns_mul_i32 s44, s44, 36864\ns_add_u32 s44, s44, {WS_H}")
    a("s_mul_i32 s50, s33, 9\ns_add_u32 s50, s50, 8\ns_lshr_b32 s51, s50, 1\ns_lshl_b32 s51, s51, 10\ns_and_b32 s50, s50, 1\ns_lshl_b32 s50, s50, 3\ns_add_u32 s50, s50, s51\ns_add_u32 s50, s50, s44")
    a("v_mov_b32 v28, 0\nv_mov_b32 v29, 0")
    for i in range(2):
        a(f"v_dot2_f32_bf16 v{ACC+2*i}, v{20+i}, s46, v{ACC+2*i}")
        a(f"v_dot2_f32_bf16 v{ACC+2*i+1}, v{20+i}, s47, v{ACC+2*i+1}")
    for i in range(2): a(f"v_cvt_pk_bf16_f32 v{20+i}, v{ACC+2*i}, v{ACC+2*i+1}")
    for i in range(2):
        a(f"v_dot2_f32_bf16 v28, v{20+i}, s45, v28")
        a(f"v_dot2_f32_bf16 v29, v{20+i}, v{20+i}, v29")
    a("v_mov_b32 v30, v28\nv_mov_b32 v31, v29\nv_permlane16_swap_b32 v28, v30\nv_permlane16_swap_b32 v29, v31\nv_add_f32 v28, v28, v30\nv_add_f32 v29, v29, v31")
    a(f"s_mul_i32 s51, s43, {16*192}\ns_mul_i32 s52, s33, 24\ns_add_u32 s51, s51, s52\ns_add_u32 s51, s51, {WS_ST+16}")
    a("v_mul_u32_u24 v3, 192, v3\ns_mov_b32 exec_hi, 0")
    a("buffer_store_dwordx2 v[20:21], v12, s[28:31], s50 offen")
    a("s_mov_b64 exec, 0xffff")
    a("buffer_store_dwordx2 v[28:29], v3, s[28:31], s51 offen")
    a("K3_END:")
    a("s_endpgm")
    return a, dict(grid=256, block=576, lds=WOL + 82944 + 64)

def k4():
    a = Asm()
    BIASL, RING, SLOT = 0, 2048, 36864
    B0 = 112
    ACC = [48, 64, 80, 96]
    AH = 0
    AA, NA = 72, 8
    D = 6
    VA = 4
    VS, V1P, V1S, V2, VST, VB, VR, VMU = 12, 13, 14, 15, 16, 17, 18, 19
    TMP = 20
    CV = 28
    BQ = 36
    a("s_cmp_ge_u32 s2, 256\ns_cbranch_scc1 K4_END")
    a("s_load_dwordx4 s[4:7], s[0:1], 48\ns_load_dwordx2 s[8:9], s[0:1], 64\ns_load_dwordx2 s[12:13], s[0:1], 96")
    a("v_and_b32 v1, 63, v0\nv_lshrrev_b32 v2, 6, v0")
    a("v_readfirstlane_b32 s34, v2")
    a("s_and_b32 s32, s2, 7\ns_lshl_b32 s32, s32, 1\ns_bfe_u32 s35, s2, 0x10003\ns_add_u32 s32, s32, s35")
    a("s_lshr_b32 s33, s2, 4\ns_lshl_b32 s33, s33, 2\ns_add_u32 s33, s33, s34")
    a(f"v_lshlrev_b32 v{VST}, 4, v1")
    a("v_lshrrev_b32 v2, 3, v1\nv_and_b32 v3, 7, v1\nv_bfe_u32 v20, v1, 4, 1\nv_lshlrev_b32 v20, 2, v20\nv_xor_b32 v3, v3, v20\nv_lshlrev_b32 v3, 4, v3")
    a(f"v_mul_u32_u24 v{V1P}, 9216, v2\nv_add_u32 v{V1P}, v{V1P}, v3\nv_mul_u32_u24 v{V2}, 1152, v2\nv_add_u32 v{V2}, v{V2}, v3")
    a(f"v_lshrrev_b32 v2, 2, v1\nv_and_b32 v3, 3, v1\nv_mul_u32_u24 v{V1S}, 9216, v2\nv_lshl_add_u32 v{V1S}, v3, 4, v{V1S}")
    a("s_waitcnt lgkmcnt(0)")
    srd(a, 16, 4, 576*4608*2); srd(a, 20, 8, 576*4608*2); srd(a, 24, 6, 4608*2); srd(a, 28, 12, WS_SIZE)
    a(f"s_mul_i32 s36, s32, 576\ns_lshl_b32 s37, s35, 6\ns_add_u32 s37, s37, s36\ns_mul_i32 s38, s34, {72*9216}\ns_add_u32 s37, s37, s38")
    a(f"s_xor_b32 s38, s35, 1\ns_lshl_b32 s38, s38, 9\ns_add_u32 s38, s38, s36\ns_mul_i32 s39, s34, {144*9216}\ns_add_u32 s38, s38, s39")
    a(f"s_mul_i32 s39, s34, 9216\ns_add_u32 s39, s39, {RING}")
    a("s_mul_i32 s40, s32, 288\ns_mul_i32 s41, s34, 72\ns_lshl_b32 s42, s35, 5\ns_add_u32 s41, s41, s42")
    for i in range(9):
        a(f"s_add_u32 s42, s41, {8*i}\ns_sub_u32 s43, s42, 288\ns_cmp_ge_u32 s42, 288\ns_cselect_b32 s42, s43, s42\ns_add_u32 s42, s42, s40\ns_mul_i32 s{48+i}, s42, 1152")
    a(f"s_mul_i32 s44, s33, 36864\ns_add_u32 s45, s44, {WS_H}")
    a(f"s_mul_i32 s46, s32, {64*36864}\ns_add_u32 s46, s46, s44\ns_add_u32 s46, s46, {WS_PART}")
    a(f"s_mul_i32 s47, s33, {32*192}\ns_add_u32 s47, s47, {WS_ST}")
    vm = []
    def dma(st, i):
        dst = (st % 4) * SLOT + i * 1024
        if st < 8:
            p, kh = st // 2, st % 2
            return [f"s_add_u32 m0, s39, {dst}", f"s_add_u32 s60, s37, {(288*kh + 8*i)*9216 + 128*p}"], f"buffer_load_dwordx4 v{V1P}, s[16:19], s60 offen lds"
        if st == 8:
            return [f"s_add_u32 m0, s39, {dst}", f"s_add_u32 s60, s38, {16*i*9216}"], f"buffer_load_dwordx4 v{V1S}, s[16:19], s60 offen lds"
        np_ = st - 9
        d = dst - 128*np_
        return [f"s_add_u32 m0, s39, {d}" if d >= 0 else f"s_sub_u32 m0, s39, {-d}"], f"buffer_load_dwordx4 v{V2}, s[20:23], s{48+i} offen offset:{128*np_} lds"
    a("v_and_b32 v2, 31, v1\nv_lshrrev_b32 v3, 5, v1\nv_mul_u32_u24 v2, 192, v2\nv_mul_u32_u24 v20, 96, v3\nv_add_u32 v2, v2, v20")
    for i in range(6): a(f"buffer_load_dwordx4 {vr(48+4*i,4)}, v2, s[28:31], s47 offen offset:{16*i}"); vm.append('st')
    a("s_lshl_b32 s42, s35, 5\nv_add_u32 v20, s42, v0\nv_add_u32 v20, s40, v20\nv_lshlrev_b32 v20, 1, v20")
    a("s_xor_b32 s42, s35, 1\ns_lshl_b32 s42, s42, 8\ns_add_u32 s42, s42, s40\nv_and_b32 v21, 31, v0\nv_add_u32 v21, s42, v21\nv_lshlrev_b32 v21, 1, v21")
    a("buffer_load_ushort v22, v20, s[24:27], 0 offen\nbuffer_load_ushort v23, v21, s[24:27], 0 offen"); vm += ['b', 'b']
    for i in range(9):
        s_, v_ = dma(0, i)
        for x in s_: a(x)
        a(v_); vm.append(('d', 0))
    for s in range(36):
        a(f"s_add_u32 s60, s45, {(s//4)*4096}") if s % 4 == 0 else None
        a(f"buffer_load_dwordx4 {vr(B0+4*s,4)}, v{VST}, s[28:31], s60 offen offset:{(s%4)*1024}"); vm.append(('h', s))
    for i in range(9):
        s_, v_ = dma(1, i)
        for x in s_: a(x)
        a(v_); vm.append(('d', 1))
    a("v_bfe_u32 v24, v1, 2, 2\nv_lshl_add_u32 v24, v3, 2, v24")
    a("v_bfe_u32 v25, v1, 4, 1\nv_and_b32 v26, 3, v1\nv_lshlrev_b32 v26, 3, v26\nv_lshl_add_u32 v25, v25, 5, v26")
    a(f"v_lshl_add_u32 v{VS}, v24, 6, v25\nv_add_u32 v{VS}, {RING + (8 % 4)*SLOT}, v{VS}")
    a("v_lshl_add_u32 v26, v24, 7, v25\nv_bfe_u32 v27, v1, 3, 1\nv_lshlrev_b32 v27, 6, v27")
    a("v_add_u32 v24, v26, v27\nv_xor_b32 v27, 64, v27\nv_add_u32 v25, v26, v27")
    for sl in range(4):
        a(f"v_add_u32 v{VA+2*sl}, {RING + sl*SLOT}, v24\nv_add_u32 v{VA+2*sl+1}, {RING + sl*SLOT}, v25")
    a(f"v_lshlrev_b32 v{VB}, 4, v3")
    def vwait(tag):
        idx = max(i for i, t in enumerate(vm) if t == tag)
        return f"s_waitcnt vmcnt({len(vm) - 1 - idx})"
    a(vwait('b'))
    a(f"s_mov_b32 s61, {hx(f2u(ALPHA))}\ns_mov_b32 s62, {hx(f2u(GA))}\ns_mov_b32 s63, 0x00003f80\ns_mov_b32 s64, 0x3f800000")
    a("v_lshlrev_b32 v22, 16, v22\nv_lshlrev_b32 v23, 16, v23\nv_mul_f32 v22, s61, v22\nv_mul_f32 v23, s61, v23")
    a("v_lshlrev_b32 v20, 2, v0\nv_and_b32 v21, 31, v0\nv_lshlrev_b32 v21, 2, v21")
    a(f"ds_write_b32 v20, v22 offset:{BIASL}\nds_write_b32 v21, v23 offset:{BIASL+1024}")
    for i in range(1, 12):
        a(f"v_add_f32 v48, v48, v{48+2*i}\nv_add_f32 v49, v49, v{49+2*i}")
    a("v_mov_b32 v50, v48\nv_mov_b32 v51, v49\nv_permlane32_swap_b32 v48, v50\nv_permlane32_swap_b32 v49, v51\nv_add_f32 v48, v48, v50\nv_add_f32 v49, v49, v51")
    a(f"v_mul_f32 v48, {hx(f2u(1/576))}, v48\nv_mul_f32 v49, {hx(f2u(1/576))}, v49")
    a("v_fma_f32 v49, -v48, v48, v49\nv_max_f32 v49, 0, v49")
    a(f"v_add_f32 v50, {hx(f2u(1e-5))}, v49\nv_rsq_f32 v50, v50")
    a(f"v_mul_f32 v49, v49, v50\nv_mul_f32 v49, v49, v50\nv_add_f32 v49, {hx(f2u(1e-5))}, v49\nv_rsq_f32 v49, v49")
    a(f"v_mul_f32 v49, v49, v50\nv_mul_f32 v{VR}, s61, v49\nv_sub_f32 v{VMU}, 0, v48")
    slots = []
    for st in range(18):
        sl = st % 4
        if st < 8:
            p, kh = st // 2, st % 2
            for ks in range(18):
                for blk in range(2):
                    s = 18*kh + ks
                    slots.append(dict(st=st, rd=(VA+2*sl+blk, ks*2048, ks*2048+1024), acc=ACC[2*(p%2)+blk], b=vr(B0+4*s,4), first=(s == 0), last=(s == 35), bi=2*p+blk, need=('n', s)))
        elif st == 8:
            for s in range(36):
                slots.append(dict(st=st, rd=(VS, s*1024, s*1024+512), acc=ACC[0], b=vr(B0+4*s,4), first=(s == 0), last=(s == 35), bi=8, need=None))
        else:
            np_ = st - 9
            for ks in range(18):
                for blk in range(2):
                    slots.append(dict(st=st, rd=(VA+2*sl+blk, ks*2048, ks*2048+1024), acc=B0+16*(2*(np_%2)+blk), b=ar(AH+4*ks,4), first=(ks == 0), last=(ks == 17), nb=2*np_+blk, need=('g', ks)))
    N = len(slots)
    Q = []
    for s in range(36):
        items = []
        if s % 2 == 0: items.append([0, 'VW', -1, None, ('h', min(s+1, 35))])
        for d in range(4):
            r = B0+4*s+d; t = TMP + 2*d
            items.append([4, f"v_dot2_f32_bf16 v{t}, v{r}, s63, v{VMU}", -1, None, None])
            items.append([4, f"v_dot2_f32_bf16 v{t+1}, v{r}, s64, v{VMU}", -1, None, None])
        for d in range(4):
            r = B0+4*s+d; t = TMP + 2*d
            items.append([4, f"v_cvt_pk_bf16_f32 v{r}, v{t}, v{t+1}", -1, None, None])
        items[-1][3] = ('n', s)
        Q += items
    def gelu(acc, bi, ready):
        it = []
        for q in range(4):
            bq = BQ + 4*(q % 2)
            R = [acc+4*q+e for e in range(4)]; T = [TMP+4*(q%2)+e for e in range(4)]
            it.append([0, 'BW', ready, None, (bi, q)])
            for e in range(4): it.append([4, f"v_fma_f32 v{R[e]}, v{R[e]}, v{VR}, v{bq+e}", ready, None, None])
            it.append([0, 'BL', ready, None, (bi, q)])
            for e in range(4): it.append([4, f"v_fma_f32 v{T[e]}, v{R[e]}, v{R[e]}, s62", ready, None, None])
            for e in range(4): it.append([4, f"v_mul_f32 v{T[e]}, v{T[e]}, v{R[e]}", ready, None, None])
            for e in range(4): it.append([8, f"v_exp_f32 v{T[e]}, v{T[e]}", ready, None, None])
            for e in range(4): it.append([4, f"v_add_f32 v{T[e]}, 1.0, v{T[e]}", ready, None, None])
            for e in range(4): it.append([8, f"v_rcp_f32 v{T[e]}, v{T[e]}", ready, None, None])
            for e in range(4): it.append([4, f"v_mul_f32 v{T[e]}, v{T[e]}, v{R[e]}", ready, None, None])
            for e in range(2): it.append([4, f"v_cvt_pk_bf16_f32 v{CV+e}, v{T[2*e]}, v{T[2*e+1]}", ready, None, None])
            for e in range(2): it.append([4, f"v_accvgpr_write_b32 a{AH+8*bi+2*q+e}, v{CV+e}", ready, None, None])
            if q % 2 == 1: it[-1][3] = ('g', 2*bi + q//2)
        it.append([0, 'FREE', ready, ('acc', acc), None])
        return it
    def outp(acc, nb, ready):
        it = []
        for hs in range(2):
            for e in range(4): it.append([4, f"v_cvt_pk_bf16_f32 v{CV+4*hs+e}, v{acc+8*hs+2*e}, v{acc+8*hs+2*e+1}", ready, None, None])
            it.append([8, 'ST', ready, None, (nb, hs)])
        it.append([0, 'FREE', ready, ('acc', acc), None])
        return it
    ds = []
    ds_done = [0]
    bias_order = [(bi, q) for bi in range(9) for q in range(4)]
    bias_next = [0]
    pend_bias = []
    def bias_load():
        bi, q = bias_order[bias_next[0]]; bias_next[0] += 1
        a(f"ds_read_b128 {vr(BQ+4*(q%2),4)}, v{VB} offset:{BIASL + (32*bi+8*q)*4}"); ds.append(('b', bi, q))
    def lwait(tag):
        idx = max(i for i, t in enumerate(ds) if t == tag)
        if idx < ds_done[0]: return None
        ds_done[0] = idx + 1
        n = len(ds) - 1 - idx
        assert n <= 15
        return f"s_waitcnt lgkmcnt({n})"
    provided = set(); accbusy = set()
    def emit(item):
        c, t, _, prov, arg = item
        if t == 'VW': a(vwait(arg))
        elif t == 'BW':
            if ('b',) + arg not in ds:
                while pend_bias: pend_bias.pop(); bias_load()
            w = lwait(('b',) + arg)
            if w: a(w)
        elif t == 'BL':
            if bias_next[0] + len(pend_bias) < 36: pend_bias.append(1)
        elif t == 'ST':
            nb, hs = arg; k = 2*nb + hs
            a(f"s_add_u32 s65, s46, {(k//4)*4096}")
            a(f"buffer_store_dwordx4 {vr(CV+4*hs,4)}, v{VST}, s[28:31], s65 offen offset:{(k%4)*1024}"); vm.append('o')
        elif t == 'FREE': accbusy.discard(prov[1]); return
        else: a(t)
        if prov: provided.add(prov)
    def rdA(m):
        r, o0, o1 = slots[m]['rd']; d = AA + 4*(m % NA)
        a(f"ds_read_b64_tr_b16 {ar(d,2)}, v{r} offset:{o0}"); ds.append(('a', m, 0))
        a(f"ds_read_b64_tr_b16 {ar(d+2,2)}, v{r} offset:{o1}"); ds.append(('a', m))
    ds += ['w', 'w']
    a(vwait(('d', 0)) + " lgkmcnt(0)"); ds_done[0] = 2
    a("s_barrier")
    for m in range(D): rdA(m)
    bias_load(); bias_load()
    dq = []
    def queue_dma(st):
        if st < 18:
            for i in range(9): dq.append((st, ) + dma(st, i))
    queue_dma(2)
    salu_pend = []
    stall = 0
    for m in range(N):
        sl = slots[m]
        forced = 0
        while (sl['need'] and sl['need'] not in provided) or (sl['first'] and sl['acc'] in accbusy):
            it = Q.pop(0); emit(it); forced += it[0]
        stall += forced
        w = lwait(('a', m))
        if w: a(w)
        acc = vr(sl['acc'], 16)
        a(f"v_mfma_f32_32x32x16_bf16 {acc}, {ar(AA+4*(m%NA),4)}, {sl['b']}, {'0' if sl['first'] else acc}")
        if sl['last']:
            accbusy.add(sl['acc'])
            Q += gelu(sl['acc'], sl['bi'], m + 2) if 'bi' in sl else outp(sl['acc'], sl['nb'], m + 2)
        budget = 16
        if m % 2 == 1 and m + 1 < N:
            w = lwait(('a', min(m + 2, N - 1)))
            if w: a(w)
        elif dq and dq[0][1]:
            a(dq[0][1].pop(0))
        nm = m + D
        if nm < N:
            if slots[nm]['st'] != slots[nm-1]['st']:
                st = slots[nm]['st']
                assert not dq
                a(vwait(('d', st))); a("s_barrier")
                queue_dma(st + 2)
                budget -= 8
            rdA(nm)
        while pend_bias: pend_bias.pop(); bias_load(); budget -= 4
        if dq and m % 3 == 2:
            st, s_, v_ = dq.pop(0)
            for x in s_: a(x); budget -= 4
            a(v_); vm.append(('d', st)); budget -= 4
        while Q and Q[0][2] <= m and Q[0][0] <= budget:
            it = Q.pop(0); emit(it); budget -= it[0]
    while Q: emit(Q.pop(0))
    print("k4 forced VALU cycles:", stall, file=sys.stderr)
    a("K4_END:")
    a("s_endpgm")
    return a, dict(grid=256, block=256, lds=RING + 4*SLOT)

def k5():
    a = Asm()
    a("s_cmp_ge_u32 s2, 576\ns_cbranch_scc1 K5_END")
    a("s_load_dwordx4 s[4:7], s[0:1], 72\ns_load_dwordx2 s[12:13], s[0:1], 96")
    a("v_and_b32 v1, 63, v0\nv_lshrrev_b32 v2, 6, v0")
    a("v_readfirstlane_b32 s34, v2")
    a("s_lshl_b32 s32, s2, 2\ns_add_u32 s32, s32, s34")
    a("s_mul_i32 s33, s32, 58255\ns_lshr_b32 s33, s33, 21")
    a("s_mul_i32 s35, s33, 36\ns_sub_u32 s35, s32, s35")
    a("v_lshlrev_b32 v2, 4, v1\nv_lshrrev_b32 v3, 5, v1\nv_lshlrev_b32 v4, 3, v3")
    a("s_waitcnt lgkmcnt(0)")
    srd(a, 16, 4, 576*2); srd(a, 20, 6, XBYTES); srd(a, 28, 12, WS_SIZE)
    a(f"s_lshl_b32 s36, s32, 10\ns_add_u32 s37, s36, {WS_H}\ns_add_u32 s38, s36, {WS_PART}\ns_lshl_b32 s39, s35, 5")
    for f in range(16):
        a(f"buffer_load_dwordx4 {vr(32+4*f,4)}, v2, s[28:31], s38 offen")
        if f < 15: a(f"s_add_u32 s38, s38, {64*36864}")
    a("buffer_load_dwordx4 v[24:27], v2, s[28:31], s37 offen")
    a("buffer_load_dwordx2 v[28:29], v4, s[16:19], s39 offen\nbuffer_load_dwordx2 v[30:31], v4, s[16:19], s39 offen offset:16")
    a(f"s_mov_b32 s40, 0x00003f80\ns_mov_b32 s41, 0x3f800000\ns_mov_b32 s42, {hx(f2u(1/ALPHA))}")
    for i in range(8): a(f"v_mov_b32 v{8+i}, 0")
    a("v_and_b32 v5, 31, v1\nv_mul_u32_u24 v5, 1152, v5\nv_lshl_add_u32 v5, v3, 4, v5")
    a("s_mul_i32 s43, s33, 36864\ns_add_u32 s43, s43, s39")
    for f in range(16):
        if f % 4 == 0: a(f"s_waitcnt vmcnt({18-3-f})")
        for d in range(4):
            a(f"v_dot2_f32_bf16 v{8+2*d}, v{32+4*f+d}, s40, v{8+2*d}")
            a(f"v_dot2_f32_bf16 v{9+2*d}, v{32+4*f+d}, s41, v{9+2*d}")
    for i in range(8): a(f"v_mul_f32 v{8+i}, s42, v{8+i}")
    a("s_waitcnt vmcnt(0)")
    for src in (28, 24):
        for d in range(4):
            a(f"v_dot2_f32_bf16 v{8+2*d}, v{src+d}, s40, v{8+2*d}")
            a(f"v_dot2_f32_bf16 v{9+2*d}, v{src+d}, s41, v{9+2*d}")
    for d in range(4): a(f"v_cvt_pk_bf16_f32 v{16+d}, v{8+2*d}, v{9+2*d}")
    a("v_permlane32_swap_b32 v16, v18\nv_permlane32_swap_b32 v17, v19")
    a("buffer_store_dwordx4 v[16:19], v5, s[20:23], s43 offen")
    a("K5_END:")
    a("s_endpgm")
    return a, dict(grid=576, block=256, lds=0)
```

```python
import sys
import gen
from k2 import k2
ks = [("qkv_kernel", gen.k1), ("attn_kernel", k2)]
try:
    from k345 import k3, k4, k5
    ks += [("oproj_kernel", k3), ("mlp_kernel", k4), ("reduce_kernel", k5)]
except ImportError: pass
out = sys.argv[1] if len(sys.argv) > 1 else f"cdna_kernels/{gen.NAME}.s"
open(out, "w").write(gen.build(ks))
```

```python
from gen import *
import gen

SX, SWO, SW1, SW2, SWS, SB1, SB2, SOUT = 4, 8, 12, 16, 20, 24, 28, 32
def sr(b): return f"s[{b}:{b+3}]"
S_W, S_C, S_J, S_FC, S_TBM, S_ODD = 36, 37, 38, 39, 40, 41

class VM:
    def __init__(self): self.l = []
    def add(self, tag): self.l.append(tag)
    def wait(self, tag):
        idx = max(i for i, t in enumerate(self.l) if t == tag)
        n = len(self.l) - 1 - idx
        assert n <= 63, n
        return f"s_waitcnt vmcnt({n})"

def poll(a, name, voff, soff, vtmp, cmp_instr):
    a(f"s_mov_b32 s3, 0x8000")
    a(f"{name}_P:")
    a(f"buffer_load_dword v{vtmp}, v{voff}, {sr(SWS)}, {soff} offen sc1")
    a("s_waitcnt vmcnt(0)")
    a(cmp_instr)
    a(f"s_cbranch_vccz {name}_D")
    a("s_sub_u32 s3, s3, 1\ns_cmp_eq_u32 s3, 0")
    a(f"s_cbranch_scc1 {name}_D")
    a("s_sleep 1")
    a(f"s_branch {name}_P")
    a(f"{name}_D:")

def main_kernel():
    a = Asm()
    vm = VM()
    a("s_cmp_ge_u32 s2, 256\ns_cbranch_scc1 M_END")
    a("s_load_dwordx2 s[44:45], s[0:1], 96\ns_load_dwordx2 s[46:47], s[0:1], 0\ns_load_dwordx2 s[48:49], s[0:1], 32")
    a("s_load_dwordx8 s[52:59], s[0:1], 48\ns_load_dwordx2 s[50:51], s[0:1], 80")
    a("v_and_b32 v1, 63, v0\nv_lshrrev_b32 v2, 6, v0")
    a(f"v_readfirstlane_b32 s{S_W}, v2")
    a(f"s_and_b32 s{S_C}, s2, 7\ns_lshl_b32 s{S_C}, s{S_C}, 2\ns_lshr_b32 s3, s2, 6\ns_add_u32 s{S_C}, s{S_C}, s3\ns_bfe_u32 s{S_J}, s2, 0x30003")
    a(f"s_and_b32 s{S_FC}, s2, 3\ns_lshl_b32 s{S_FC}, s{S_FC}, 2\ns_bfe_u32 s3, s2, 0x20003\ns_add_u32 s{S_FC}, s{S_FC}, s3\ns_and_b32 s{S_ODD}, s3, 1")
    a(f"s_bfe_u32 s{S_TBM}, s2, 0x10002\ns_lshl_b32 s{S_TBM}, s{S_TBM}, 3\ns_lshr_b32 s3, s2, 5\ns_add_u32 s{S_TBM}, s{S_TBM}, s3\ns_lshl_b32 s{S_TBM}, s{S_TBM}, 2\ns_add_u32 s{S_TBM}, s{S_TBM}, s{S_W}")
    a("v_lshlrev_b32 v2, 4, v1\nv_and_b32 v3, 31, v1\nv_lshlrev_b32 v4, 2, v3\nv_lshlrev_b32 v5, 3, v1")
    FLAG = 32 * REC + 1280
    QM = [8, 12]; QL = [16, 18]; KM = [20, 24]; KL = 28; V0 = 32
    S = [48, 80]; P = [112, 128]; O = [144, 160]
    AK, AL, AV = (176, 177, 178), (179, 180, 181), (182, 183, 184)
    WOV = 185
    XR = 192
    TCH = 202
    a(f"s_lshl_b32 s60, s{S_C}, 5\ns_lshl_b32 s61, s{S_J}, 2\ns_add_u32 s60, s60, s61\ns_add_u32 s60, s60, s{S_W}")
    a(f"s_lshl_b32 s61, s60, 11\ns_add_u32 s61, s61, {WS_QM}\ns_lshl_b32 s62, s60, 8\ns_add_u32 s62, s62, {WS_QL}\ns_mov_b32 s63, {WS_KMAX}")
    a(f"s_lshl_b32 s42, s{S_W}, 10\ns_min_u32 s43, s{S_W}, 2\ns_lshl_b32 s43, s43, 10")
    a("s_waitcnt lgkmcnt(0)")
    srd(a, SWS, 44, WS_SIZE)
    for u in range(2):
        a(f"buffer_load_dwordx4 {vr(QM[u],4)}, v2, {sr(SWS)}, s61 offen offset:{1024*u}"); vm.add('q')
        a(f"buffer_load_dword v{QL[u]}, v4, {sr(SWS)}, s62 offen offset:{128*u}"); vm.add('q')
    a(f"buffer_load_dwordx2 v[6:7], v5, {sr(SWS)}, s63 offen"); vm.add('q')
    def kv_piece(q, i):
        return [f"s_add_u32 m0, {'s42' if i < 4 else 's43'}, {q*4*REC + i*4096}"], f"buffer_load_dwordx4 v2, {sr(SWS)}, m0 offen lds", ('kv', q)
    for q in range(2):
        for i in range(5):
            s_, v_, t_ = kv_piece(q, i)
            a(s_[0]); a(v_); vm.add(t_)
    srd(a, SX, 46, XBYTES); srd(a, SWO, 48, 576*576*2); srd(a, SW1, 52, 576*4608*2); srd(a, SB1, 54, 4608*2)
    srd(a, SW2, 56, 576*4608*2); srd(a, SB2, 58, 576*2); srd(a, SOUT, 50, XBYTES)
    RS = 13
    a(f"v_mov_b32 v{AK[0]}, v2\nv_lshlrev_b32 v{AL[0]}, 2, v1\nv_add_u32 v{AL[0]}, 2048, v{AL[0]}")
    a("v_mov_b32 v40, 11\nv_mov_b32 v41, 10")
    a("v_and_b32 v42, 27, v3\nv_cmp_eq_u32 vcc, 18, v42\nv_cndmask_b32 v40, v40, v41, vcc")
    a("v_subrev_u32 v41, 8, v3\nv_cmp_gt_u32 vcc, 18, v3\nv_cndmask_b32 v40, v40, v41, vcc")
    a("v_add_u32 v41, 4, v3\nv_cmp_gt_u32 vcc, 16, v3\nv_cndmask_b32 v40, v40, v41, vcc")
    a("v_subrev_u32 v41, 4, v3\nv_cmp_gt_u32 vcc, 12, v3\nv_cndmask_b32 v40, v40, v41, vcc")
    a("v_add_u32 v41, 12, v3\nv_cmp_gt_u32 vcc, 4, v3\nv_cndmask_b32 v40, v40, v41, vcc")
    a("v_lshrrev_b32 v41, 5, v1\nv_mul_u32_u24 v41, 320, v41\nv_lshl_add_u32 v40, v40, 4, v41")
    a(f"v_add_u32 v{AV[0]}, 2304, v40")
    a(f"v_mov_b32 v{KL+1}, 0x00003f80")
    for u in range(2):
        for i in range(16): a(f"v_mov_b32 v{O[u]+i}, 0")
    for n, res in enumerate((f"s{S_W}", None, 8)):
        if n == 0: a(f"s_lshl_b32 s3, s{S_W}, 6\nv_add_u32 v40, s3, v1")
        elif n == 1: a("v_add_u32 v40, 256, v0")
        else: a("v_add_u32 v40, 512, v1")
        a("v_mul_u32_u24 v41, 7282, v40\nv_lshrrev_b32 v41, 16, v41")
        a("v_mul_u32_u24 v42, 9, v41\nv_sub_u32 v42, v40, v42\nv_lshlrev_b32 v42, 4, v42")
        a("v_lshrrev_b32 v43, 4, v41\nv_bfe_u32 v44, v41, 2, 2\nv_bfe_u32 v45, v41, 1, 1\nv_and_b32 v46, 1, v41")
        a("v_mul_u32_u24 v47, 18, v43\nv_lshl_add_u32 v47, v46, 3, v47\nv_lshl_add_u32 v47, v45, 2, v47\nv_add_u32 v47, v47, v44")
        a(f"v_mul_u32_u24 v47, 1152, v47\nv_add_u32 v{WOV+2*n}, v47, v42")
        a("v_lshl_add_u32 v46, v46, 2, v44\nv_lshrrev_b32 v47, 1, v46\nv_and_b32 v46, 1, v46")
        a("v_lshl_add_u32 v47, v43, 3, v47\nv_lshl_add_u32 v47, v45, 2, v47\nv_mul_u32_u24 v47, 18, v47\nv_add3_u32 v46, v47, v46, 16")
        a(f"v_mul_u32_u24 v46, 1152, v46\nv_add_u32 v{WOV+2*n+1}, v46, v42")
    a(f"s_mul_i32 s64, s{S_J}, 144")
    a(f"s_mul_i32 s65, s{S_W}, {72*1152}\ns_add_u32 s65, s65, s64\ns_mul_i32 s66, s{S_W}, 9216")
    a(f"s_and_b32 s67, s{S_J}, 1")
    a("v_lshrrev_b32 v40, 5, v1\nv_mul_u32_u24 v41, 1152, v3\nv_lshl_add_u32 v203, v40, 3, v41")
    a("v_and_b32 v40, 15, v1\nv_bfe_u32 v41, v1, 4, 1\nv_mul_u32_u24 v40, 1152, v40\nv_lshl_add_u32 v204, v41, 3, v40")
    a(f"s_lshl_b32 s68, s{S_C}, 1\ns_lshr_b32 s3, s{S_W}, 1\ns_add_u32 s68, s68, s3")
    a(f"s_mul_i32 s69, s68, 36864\ns_add_u32 s69, s69, s64\ns_and_b32 s3, s{S_W}, 1\ns_mul_i32 s70, s3, {16*1152}\ns_add_u32 s70, s70, s69")
    a("s_lshl_b32 s3, s3, 6\ns_add_u32 s69, s69, s3\ns_lshl_b32 s3, s67, 4\ns_add_u32 s69, s69, s3")
    a("s_xor_b32 s3, s67, 1\ns_lshl_b32 s3, s3, 7\ns_add_u32 s70, s70, s3")
    for i in range(2):
        a(f"v_add_u32 v40, {256*i}, v0\nv_min_u32 v40, 323, v40\nv_mul_u32_u24 v41, 3641, v40\nv_lshrrev_b32 v41, 16, v41")
        a(f"v_mul_u32_u24 v42, 18, v41\nv_sub_u32 v42, v40, v42\nv_mul_u32_u24 v41, 9216, v41\nv_lshl_add_u32 v{205+i}, v42, 7, v41")
    a(f"s_lshr_b32 s3, s2, 3\ns_mul_i32 s71, s3, {18*9216}\ns_and_b32 s3, s2, 3\ns_mul_i32 s3, s3, 2304\ns_add_u32 s71, s71, s3")
    for i in range(2): a(f"v_add_u32 v40, {256*i}, v0\nv_min_u32 v40, 323, v40\nv_lshlrev_b32 v{207+i}, 7, v40")
    a(f"s_lshr_b32 s3, s2, 3\ns_mul_i32 s73, s3, 41472\ns_and_b32 s3, s2, 3\ns_mul_i32 s3, s3, 1327104\ns_add_u32 s73, s73, s3")
    misc = [f"buffer_load_dword v{TCH}, v{205+i}, {sr(SW1)}, s71 offen" for i in range(2)]
    misc += [f"buffer_load_dword v{TCH}, v{207+i}, {sr(SW2)}, s73 offen" for i in range(2)]
    misc += [f"buffer_load_dwordx2 {vr(XR+2*q,2)}, v203, {sr(SX)}, s69 offen offset:{16*q}" for q in range(4)]
    misc += [f"buffer_load_dwordx2 {vr(XR+8,2)}, v204, {sr(SX)}, s70 offen"]
    for v_ in misc: a(v_); vm.add('misc')
    for i in range(16): a(f"v_mov_b32 v{P[1]+i}, 0")
    a(f"v_mov_b32 v{S[1]+30}, 0\nv_mov_b32 v{S[1]+31}, 0")
    gen.stamp(a, "a0")
    a(vm.wait('q'))
    a("v_max_f32 v6, v6, v7")
    for dp in ("quad_perm:[1,0,3,2]", "quad_perm:[2,3,0,1]", "row_half_mirror", "row_mirror"):
        a(f"v_max_f32_dpp v6, v6, v6 {dp} row_mask:0xf bank_mask:0xf")
    a("v_mov_b32 v7, v6\nv_permlane16_swap_b32 v6, v7\nv_max_f32 v6, v6, v7")
    a("v_mov_b32 v7, v6\nv_permlane32_swap_b32 v6, v7\nv_max_f32 v6, v6, v7")
    a("s_mov_b64 s[44:45], 0")
    for u in range(2):
        t = 40 + 2*u
        a(f"v_mov_b32 v{t}, 0")
        for i in range(4): a(f"v_dot2_f32_bf16 v{t}, v{QM[u]+i}, v{QM[u]+i}, v{t}")
        a(f"v_mov_b32 v{t+1}, v{t}\nv_permlane32_swap_b32 v{t}, v{t+1}\nv_add_f32 v{t}, v{t}, v{t+1}")
        a(f"v_dot2_f32_bf16 v{t}, v{QL[u]}, v{QL[u]}, v{t}")
        a(f"v_mul_f32 v{t}, v{t}, v6\nv_sqrt_f32 v{t}, v{t}\nv_mul_f32 v{t}, {hx(f2u(1.01))}, v{t}")
        a(f"v_cmp_nge_f32 vcc, {hx(f2u(40.0))}, v{t}\ns_or_b64 s[44:45], s[44:45], vcc")
        a(f"v_add_u32 v{t}, 0xffff, v{t}\nv_lshrrev_b32 v{t}, 16, v{t}\nv_or_b32 v{QL[u]+1}, 0x8000, v{t}")
    a("s_or_b32 s44, s44, s45")
    a(f"s_lshl_b32 s46, s{S_W}, 2\ns_add_u32 s46, s46, {FLAG}\nv_mov_b32 v40, s46\nv_mov_b32 v41, s44\nds_write_b32 v40, v41")
    a(vm.wait(('kv', 1)) + " lgkmcnt(0)\ns_barrier")
    gen.stamp(a, "a1")
    a(f"v_and_b32 v40, 3, v1\nv_lshlrev_b32 v40, 2, v40\nv_add_u32 v40, {FLAG}, v40\nds_read_b32 v41, v40")
    def off(i): return (i % RS) * REC
    def ldKl(i): return f"ds_read_b32 v{KL}, v{AL[i//RS]} offset:{off(i)}"
    def ldKm(i, t): return f"ds_read_b128 {vr(KM[t],4)}, v{AK[i//RS]} offset:{off(i)+1024*t}"
    def ldV(i, f): return f"ds_read_b128 {vr(V0+4*f,4)}, v{AV[i//RS]} offset:{off(i)+640*f}"
    def m2b(u): return f"v_mfma_f32_32x32x4_2b_bf16 {vr(S[u],32)}, {vr(KL,2)}, {vr(QL[u],2)}, 0"
    def mqk(u, t): return f"v_mfma_f32_32x32x16_bf16 {vr(S[u]+16*t,16)}, {vr(KM[t],4)}, {vr(QM[u],4)}, {vr(S[u]+16*t,16)}"
    def mpv(u, f): return f"v_mfma_f32_32x32x16_bf16 {vr(O[u],16)}, {vr(V0+4*f,4)}, {vr(P[u]+4*f,4)}, {vr(O[u],16)}"
    a(ldKl(0)); a(ldKm(0, 0)); a(ldKm(0, 1))
    a("s_waitcnt lgkmcnt(3)")
    a("v_cmp_ne_u32 vcc, 0, v41\ns_cbranch_vccnz M_SLOW")
    a("s_waitcnt lgkmcnt(0)")
    a(m2b(0))
    for i in range(16): a(f"v_mov_b32 v{V0+i}, 0")
    a(mqk(0, 0)); a(mqk(0, 1))
    WOL = 0; OL = 83008
    POS = [2, 12, 18, 24, 30, 36, 42]
    carry = []
    def cvt_last(u): return f"v_cvt_pk_bf16_f32 v{P[u]+15}, v{S[u]+30}, v{S[u]+31}"
    def phase(u, ms):
        val = []
        carry = [cvt_last(1 - u)]
        for p in range(16):
            val.append(f"v_exp_f32 v{S[u]+2*p}, v{S[u]+2*p}")
            val.extend(carry); carry = []
            val.append(f"v_exp_f32 v{S[u]+2*p+1}, v{S[u]+2*p+1}")
            carry = [f"v_cvt_pk_bf16_f32 v{P[u]+p}, v{S[u]+2*p}, v{S[u]+2*p+1}"]
        k = 0
        for n, v in enumerate(val):
            if k < 7 and n == POS[k]:
                for x in (ms[k] or []):
                    if callable(x): x()
                    else: a(x)
                k += 1
            a(v)
    dq = []
    def dslot():
        if not dq: return
        s_, v_ = dq[0]
        if s_: a(s_.pop(0))
        else:
            a(v_); dq.pop(0)
    def trip(label, ntrips, pieces, endops):
        a(f"s_mov_b32 s46, {ntrips}")
        a(".p2align 5")
        a(f"{label}:")
        dq.extend(pieces)
        for i in range(4):
            bump = (lambda R: [f"v_add_u32 v{R[0]}, {4*REC}, v{R[0]}"]) if i == 3 else (lambda R: [])
            phase(0, [[m2b(1), ldKl(i+1)],
                      [mpv(1, 0), dslot_s(a, dq), ldV(i, 0)],
                      [mpv(1, 1), dslot_s(a, dq), ldV(i, 1)],
                      [mqk(1, 0), ldKm(i+1, 0)],
                      [mqk(1, 1), ldKm(i+1, 1)],
                      [mpv(1, 2), ldV(i, 2)],
                      [mpv(1, 3), "s_waitcnt lgkmcnt(3)", ldV(i, 3)]])
            last = i == 3
            phase(1, [[m2b(0)] + bump(AK) + bump(AL) + bump(AV),
                      [mpv(0, 0), dslot],
                      [mpv(0, 1), "s_waitcnt lgkmcnt(0)"],
                      [mqk(0, 0), dslot] + (endops if last else []),
                      [mqk(0, 1), dslot if not last else "s_sub_u32 s46, s46, 1"],
                      [mpv(0, 2), dslot if not last else "s_waitcnt vmcnt(0)"],
                      [mpv(0, 3), dslot if not last else "s_cmp_lg_u32 s46, 0"]])
        assert not dq
        a("s_barrier")
        a(f"s_cbranch_scc1 {label}")
    a(f"s_add_u32 s47, s42, {8*REC}")
    pa = [([f"s_add_u32 s48, s47, {i*4096}", f"s_min_u32 m0, s48, {151*1024}"], f"buffer_load_dwordx4 v2, {sr(SWS)}, m0 offen lds") for i in range(6)]
    trip("M_LA", 5, pa, ["s_add_u32 s47, s47, 24576"])
    gen.stamp(a, "a3")
    a(f"s_mov_b32 s47, s42\ns_mov_b32 s48, s64\ns_add_u32 s49, s64, {2*72*1152}\ns_add_u32 s50, s66, {WOL+8192}\ns_mov_b32 s51, s65")
    a(f"v_mov_b32 v{AK[1]}, v{WOV}\nv_mov_b32 v{AK[2]}, v{WOV+2}\nv_mov_b32 v{AL[1]}, v{WOV+4}")
    pb = []
    for bb in range(3):
        for n in range(2):
            if bb < 2: pb.append(([f"s_add_u32 m0, s47, {WOL + bb*9216 + n*4096}", f"s_add_u32 s72, s48, {bb*72*1152}"], f"buffer_load_dwordx4 v{WOV+2*n}, {sr(SWO)}, s72 offen lds"))
            else: pb.append(([f"s_add_u32 m0, s47, {WOL + bb*9216 + n*4096}"], f"buffer_load_dwordx4 v{AK[1+n]}, {sr(SWO)}, s49 offen lds"))
    pb.append((["s_mov_b32 m0, s50"], f"buffer_load_dwordx4 v{AL[1]}, {sr(SWO)}, s51 offen lds"))
    endb = [f"s_add_u32 s47, s47, {3*9216}", f"s_add_u32 s48, s48, {3*72*1152}", f"s_add_u32 s49, s49, {3*72*1152}", f"s_add_u32 s50, s50, {4*9216}", f"s_add_u32 s51, s51, {4*72*1152}",
            "s_cmp_eq_u32 s46, 2", "s_cselect_b32 s49, s64, s49", "s_cselect_b32 s51, s64, s51", f"s_cselect_b32 s50, {WOL + 8192 + 8*9216}, s50", "s_cselect_b64 vcc, -1, 0",
            f"v_cndmask_b32 v{AK[1]}, v{AK[1]}, v{WOV+1}, vcc", f"v_cndmask_b32 v{AK[2]}, v{AK[2]}, v{WOV+3}, vcc", f"v_cndmask_b32 v{AL[1]}, v{AL[1]}, v{WOV+5}, vcc"]
    trip("M_LB", 3, pb, endb)
    a(cvt_last(1))
    for f in range(4): a(mpv(1, f))
    a("M_EPI:")
    gen.stamp(a, "a5")
    a(f"s_mul_i32 s46, s{S_C}, 73728\ns_add_u32 s46, s46, {WS_O}")
    a(f"s_lshl_b32 s47, s{S_J}, 2\ns_add_u32 s47, s47, s{S_W}")
    a("s_lshl_b32 s48, s47, 10\ns_add_u32 s48, s48, s46\ns_lshl_b32 s49, s47, 7\ns_add_u32 s49, s49, s46\ns_add_u32 s49, s49, 32768")
    a("s_add_u32 s50, s48, 36864\ns_add_u32 s51, s49, 36864")
    for u in range(2):
        a(f"v_rcp_f32 v{O[u]+10}, v{O[u]+10}")
        for i in range(10): a(f"v_mul_f32 v{O[u]+i}, v{O[u]+i}, v{O[u]+10}")
        for i in range(5): a(f"v_cvt_pk_bf16_f32 v{48+8*u+i}, v{O[u]+2*i}, v{O[u]+2*i+1}")
        a(f"buffer_store_dwordx4 {vr(48+8*u,4)}, v2, {sr(SWS)}, s{48+2*u} offen sc1")
    a("s_mov_b32 exec_hi, 0")
    for u in range(2): a(f"buffer_store_dword v{52+8*u}, v4, {sr(SWS)}, s{49+2*u} offen sc1")
    a("s_mov_b32 exec_hi, -1")
    a(f"s_lshl_b32 s52, s{S_C}, 7\ns_add_u32 s52, s52, {WS_FO}\ns_lshl_b32 s3, s47, 2\nv_mov_b32 v64, s3\nv_mov_b32 v65, 1")
    a(f"s_and_b32 s53, s{S_W}, 1\ns_lshr_b32 s54, s{S_W}, 1")
    a("v_lshrrev_b32 v70, 5, v1\nv_bfe_u32 v71, v1, 2, 2\nv_and_b32 v72, 3, v1\nv_bfe_u32 v73, v1, 4, 1")
    a("v_lshlrev_b32 v74, 2, v71\nv_lshl_add_u32 v75, v70, 1, v74\nv_mul_u32_u24 v75, 144, v75")
    a("v_lshl_add_u32 v76, v73, 2, v72\nv_lshl_add_u32 v75, v76, 3, v75")
    a(f"s_lshl_b32 s3, s53, 6\ns_lshl_b32 s55, s67, 4\ns_add_u32 s3, s3, s55\nv_add_u32 v8, s3, v75\nv_add_u32 v9, {18*2304}, v8")
    a("v_lshl_add_u32 v75, v73, 1, v74\nv_lshl_add_u32 v75, v70, 4, v75\nv_mul_u32_u24 v75, 144, v75\nv_lshl_add_u32 v75, v72, 3, v75")
    a(f"s_xor_b32 s3, s67, 1\ns_lshl_b32 s3, s3, 7\nv_add_u32 v10, s3, v75\nv_add_u32 v11, {9*4608}, v10")
    a(f"s_mul_i32 s55, s54, 36864\ns_add_u32 s55, s55, {OL}\nv_add_u32 v12, s55, v2")
    a("v_and_b32 v76, 15, v1\ns_lshl_b32 s3, s53, 4\nv_add_u32 v76, s3, v76")
    a("v_lshl_add_u32 v14, v73, 5, v76\nv_lshlrev_b32 v14, 4, v14\nv_lshl_add_u32 v13, v70, 10, v14\nv_add_u32 v13, s55, v13")
    a("v_lshl_add_u32 v15, v70, 9, v4\nv_add_u32 v15, s55, v15")
    a("v_lshrrev_b32 v77, 4, v1\nv_lshlrev_b32 v77, 9, v77\nv_lshl_add_u32 v16, v76, 2, v77\nv_add_u32 v16, s55, v16")
    a("v_lshlrev_b32 v17, 3, v76\nv_lshlrev_b32 v18, 3, v3")
    a("s_waitcnt vmcnt(0)")
    a("s_mov_b64 exec, 1")
    a(f"buffer_store_dword v65, v64, {sr(SWS)}, s52 offen sc1")
    a("s_mov_b64 exec, -1")
    a("s_barrier")
    gen.stamp(a, "o0")
    poll(a, "M_PO", 4, "s52", 66, "v_cmp_ne_u32 vcc, 1, v66")
    gen.stamp(a, "o1")
    vm = VM()
    a(f"s_mul_i32 s56, s53, 6144\ns_add_u32 s57, s55, s56\ns_mul_i32 s58, s68, 36864\ns_add_u32 s58, s58, s56\ns_add_u32 s58, s58, {WS_O}")
    for g in range(3):
        for e in range(6):
            a(f"s_add_u32 m0, s57, {(12*g+e)*1024}\ns_add_u32 s59, s58, {(12*g+e)*1024}")
            a(f"buffer_load_dwordx4 v2, {sr(SWS)}, s59 offen sc1 lds"); vm.add(('o', g))
    A0, B0, TA, TB, ACC, TACC = 80, 96, 112, 120, 128, 144
    D = 4
    ds = []; dsdone = [0]
    def lw(tag):
        idx = max(i for i, t in enumerate(ds) if t == tag)
        if idx < dsdone[0]: return
        dsdone[0] = idx + 1
        n = min(15, len(ds) - 1 - idx)
        a(f"s_waitcnt lgkmcnt({n})")
    def rdm(s):
        if s % 12 == 0: a(vm.wait(('o', s//12))); a("s_barrier")
        base, of = (8, s*2304) if s < 18 else (9, (s-18)*2304)
        if s < 32: a(f"ds_read_b128 {vr(B0+4*(s%D),4)}, v12 offset:{1024*s}"); ds.append(('m', s))
        else:
            for d in range(4): a(f"ds_read_b32 v{B0+4*(s%D)+d}, v15 offset:{1024*s+128*d}"); ds.append(('m', s))
        a(f"ds_read_b64_tr_b16 {vr(A0+4*(s%D),2)}, v{base} offset:{of}"); ds.append(('m', s))
        a(f"ds_read_b64_tr_b16 {vr(A0+4*(s%D)+2,2)}, v{base} offset:{of+144}"); ds.append(('m', s))
    def rdt(s):
        base, of = (10, s*4608) if s < 9 else (11, (s-9)*4608)
        if s < 16: a(f"ds_read_b128 {vr(TB+4*(s%2),4)}, v13 offset:{2048*s}"); ds.append(('t', s))
        else:
            for d in range(4): a(f"ds_read_b32 v{TB+4*(s%2)+d}, v16 offset:{2048*s+128*d}"); ds.append(('t', s))
        a(f"ds_read_b64_tr_b16 {vr(TA+4*(s%2),2)}, v{base} offset:{of}"); ds.append(('t', s))
        a(f"ds_read_b64_tr_b16 {vr(TA+4*(s%2)+2,2)}, v{base} offset:{of+144}"); ds.append(('t', s))
    rdm(0); rdm(1); rdt(0); rdm(2)
    for s2 in range(18):
        for e in range(2):
            s = 2*s2 + e
            lw(('m', s))
            a(f"v_mfma_f32_32x32x16_bf16 {vr(ACC,16)}, {vr(A0+4*(s%D),4)}, {vr(B0+4*(s%D),4)}, {'0' if s == 0 else vr(ACC,16)}")
            if e == 0:
                if s + 3 < 36: rdm(s + 3)
            else:
                if s2 + 1 < 18:
                    if s2 + 1 >= 16: lw(('t', s2))
                    rdt(s2 + 1)
        lw(('t', s2))
        a(f"v_mfma_f32_16x16x32_bf16 {vr(TACC,4)}, {vr(TA+4*(s2%2),4)}, {vr(TB+4*(s2%2),4)}, {'0' if s2 == 0 else vr(TACC,4)}")
        if 2*s2 + 4 < 36:
            if 2*s2 + 4 >= 32: lw(('m', 2*s2 + 2))
            rdm(2*s2 + 4)
    gen.stamp(a, "o2")
    a("s_barrier")
    a("s_mov_b32 s44, 0x3f803f80\ns_mov_b32 s45, 0x00003f80\ns_mov_b32 s46, 0x3f800000")
    a(f"s_mul_i32 s47, s68, 36864\ns_add_u32 s47, s47, {WS_H}")
    a(f"s_mul_i32 s48, s{S_J}, 9\ns_add_u32 s49, s48, s67\ns_lshr_b32 s49, s49, 1\ns_lshl_b32 s3, s53, 1\ns_add_u32 s49, s49, s3\ns_lshl_b32 s49, s49, 10\ns_add_u32 s49, s49, s47")
    a("s_xor_b32 s3, s67, 1\ns_lshl_b32 s3, s3, 3\ns_add_u32 s50, s48, s3\ns_lshr_b32 s50, s50, 1\ns_lshl_b32 s50, s50, 10\ns_lshl_b32 s3, s67, 3\ns_add_u32 s50, s50, s3\ns_add_u32 s50, s50, s47")
    a(f"s_mul_i32 s51, s68, 6144\ns_mul_i32 s3, s{S_J}, 768\ns_add_u32 s51, s51, s3\ns_add_u32 s51, s51, {WS_ST}\ns_add_u32 s52, s51, 512\ns_lshl_b32 s3, s53, 8\ns_add_u32 s51, s51, s3")
    for i in range(4): a(f"v_mov_b32 v{64+i}, 0")
    for i in range(8):
        a(f"v_dot2_f32_bf16 v{ACC+2*i}, v{XR+i}, s45, v{ACC+2*i}")
        a(f"v_dot2_f32_bf16 v{ACC+2*i+1}, v{XR+i}, s46, v{ACC+2*i+1}")
    for i in range(2):
        a(f"v_dot2_f32_bf16 v{TACC+2*i}, v{XR+8+i}, s45, v{TACC+2*i}")
        a(f"v_dot2_f32_bf16 v{TACC+2*i+1}, v{XR+8+i}, s46, v{TACC+2*i+1}")
    for i in range(8): a(f"v_cvt_pk_bf16_f32 v{48+i}, v{ACC+2*i}, v{ACC+2*i+1}")
    for i in range(2): a(f"v_cvt_pk_bf16_f32 v{56+i}, v{TACC+2*i}, v{TACC+2*i+1}")
    vm = VM()
    for hs in range(2): a(f"buffer_store_dwordx4 {vr(48+4*hs,4)}, v2, {sr(SWS)}, s49 offen offset:{1024*hs} sc1"); vm.add('hs')
    for i in range(8):
        a(f"v_dot2_f32_bf16 v64, v{48+i}, s44, v64")
        a(f"v_dot2_f32_bf16 v65, v{48+i}, v{48+i}, v65")
    for i in range(2):
        a(f"v_dot2_f32_bf16 v66, v{56+i}, s44, v66")
        a(f"v_dot2_f32_bf16 v67, v{56+i}, v{56+i}, v67")
    for i in range(4): a(f"v_mov_b32 v{68+i}, v{64+i}")
    a("v_permlane32_swap_b32 v64, v68\nv_permlane32_swap_b32 v65, v69\nv_permlane16_swap_b32 v66, v70\nv_permlane16_swap_b32 v67, v71")
    for i in range(4): a(f"v_add_f32 v{64+i}, v{64+i}, v{68+i}")
    a("s_mov_b32 exec_hi, 0")
    a(f"buffer_store_dwordx2 v[56:57], v14, {sr(SWS)}, s50 offen sc1"); vm.add('hs')
    a(f"buffer_store_dwordx2 v[64:65], v18, {sr(SWS)}, s51 offen sc1"); vm.add('hs')
    a("s_mov_b64 exec, 0xffff")
    a(f"buffer_store_dwordx2 v[66:67], v17, {sr(SWS)}, s52 offen sc1"); vm.add('hs')
    a("s_mov_b64 exec, -1")
    a(f"s_lshl_b32 s72, s68, 7\ns_add_u32 s72, s72, {WS_FH}\ns_lshl_b32 s3, s{S_J}, 1\ns_add_u32 s3, s3, s53\ns_lshl_b32 s3, s3, 2\nv_mov_b32 v44, s3\nv_mov_b32 v45, 1")
    mlp(a, vm)
    a("M_END:")
    a("s_endpgm")
    a("M_SLOW:")
    for q in range(2, 8):
        for i in range(5):
            s_, v_, t_ = kv_piece(q, i)
            a(s_[0]); a(v_)
    a("s_waitcnt vmcnt(0) lgkmcnt(0)\ns_barrier")
    a(f"v_mov_b32 v{QL[0]+1}, 0\nv_mov_b32 v{QL[1]+1}, 0\nv_mov_b32 v6, 0xff800000\nv_mov_b32 v7, 0xff800000")
    a(f"v_mov_b32 v{AK[1]}, v{AK[0]}\nv_mov_b32 v{AL[1]}, v{AL[0]}")
    a("s_mov_b32 s46, 32")
    a("M_S1:")
    a(ldKl(RS)); a(ldKm(RS, 0)); a(ldKm(RS, 1))
    a("s_waitcnt lgkmcnt(0)")
    for u in range(2): a(m2b(u))
    for u in range(2): a(mqk(u, 0)); a(mqk(u, 1))
    for u in range(2):
        for p in range(16): a(f"v_max3_f32 v{6+u}, v{S[u]+2*p}, v{S[u]+2*p+1}, v{6+u}")
    a(f"v_add_u32 v{AK[1]}, {REC}, v{AK[1]}\nv_add_u32 v{AL[1]}, {REC}, v{AL[1]}")
    a("s_sub_u32 s46, s46, 1\ns_cmp_lg_u32 s46, 0\ns_cbranch_scc1 M_S1")
    for u in range(2):
        a(f"v_mov_b32 v46, v{6+u}\nv_permlane32_swap_b32 v{6+u}, v46\nv_max_f32 v{6+u}, v{6+u}, v46")
    a("s_mov_b32 s46, 32")
    a("M_S2:")
    a(ldKl(0)); a(ldKm(0, 0)); a(ldKm(0, 1))
    for f in range(4): a(ldV(0, f))
    a("s_waitcnt lgkmcnt(0)")
    for u in range(2): a(m2b(u))
    for u in range(2): a(mqk(u, 0)); a(mqk(u, 1))
    for u in range(2):
        for r in range(32): a(f"v_sub_f32 v{S[u]+r}, v{S[u]+r}, v{6+u}")
        for r in range(32): a(f"v_exp_f32 v{S[u]+r}, v{S[u]+r}")
        for p in range(16): a(f"v_cvt_pk_bf16_f32 v{P[u]+p}, v{S[u]+2*p}, v{S[u]+2*p+1}")
        for f in range(4): a(mpv(u, f))
    a(f"v_add_u32 v{AK[0]}, {REC}, v{AK[0]}\nv_add_u32 v{AL[0]}, {REC}, v{AL[0]}\nv_add_u32 v{AV[0]}, {REC}, v{AV[0]}")
    a("s_nop 7\ns_nop 7")
    a("s_sub_u32 s46, s46, 1\ns_cmp_lg_u32 s46, 0\ns_cbranch_scc1 M_S2")
    a("s_barrier")
    for beta in range(9):
        for n in range(2):
            a(f"s_add_u32 m0, s42, {WOL + beta*9216 + n*4096}\ns_add_u32 s72, s64, {beta*72*1152 if beta < 8 else 0}")
            a(f"buffer_load_dwordx4 v{WOV+2*n+(beta == 8)}, {sr(SWO)}, s72 offen lds")
    for h in range(2):
        a(f"s_add_u32 m0, s66, {WOL + 8192 + h*4*9216}\ns_add_u32 s72, s65, {h*4*72*1152}\nbuffer_load_dwordx4 v{WOV+4}, {sr(SWO)}, s72 offen lds")
    a(f"s_mov_b32 m0, {WOL + 8192 + 8*9216}\ns_nop 0\nbuffer_load_dwordx4 v{WOV+5}, {sr(SWO)}, s64 offen lds")
    a("s_branch M_EPI")
    a("M_CODE_END:")
    return a, dict(grid=256, block=256, lds=FLAG + 64)

def dslot_s(a, dq):
    def f():
        if dq and dq[0][0]: a(dq[0][0].pop(0))
    return f

from mlp import mlp
```

```python
import sys, math, struct
from asmlib import Asm

NAME = "sequential_preLN__grouped_kv_mqa__mixer_channel_mlp__prompt"
def f2u(x): return struct.unpack('<I', struct.pack('<f', x))[0]
def hx(x): return f"0x{x & 0xffffffff:08x}"

REC = 4864
WS_KV = 0
WS_KMAX = 0x28000
WS_QM = 0x100000
WS_QL = 0x300000
WS_O = 0x400000
WS_H = 0x700000
WS_ST = 0xA00000
WS_FL = 0x30000
WS_FO = WS_FL
WS_FH = WS_FL + 4096
WS_FP = WS_FH + 8192
WS_PART = 0x1000000
WS_SIZE = 0x10000000
XBYTES = 2048 * 576 * 2
CS = math.log2(math.e) / math.sqrt(18.0)
C1 = -2.0 * math.sqrt(2.0 / math.pi) * math.log2(math.e)
C2 = C1 * 0.044715
ALPHA = -((-C2) ** (1.0 / 3.0))
GA = C1 / ALPHA

CODE_TOUCH = True
def srd(a, d, p, size):
    a(f"s_mov_b32 s{d}, s{p}\ns_mov_b32 s{d+1}, s{p+1}\ns_mov_b32 s{d+2}, {hx(size)}\ns_mov_b32 s{d+3}, 0x00020000")

def vr(b, n): return f"v[{b}:{b+n-1}]" if n > 1 else f"v{b}"
def ar(b, n): return f"a[{b}:{b+n-1}]" if n > 1 else f"a{b}"

def slot_of(d):
    return 12 + d if d < 4 else (d - 4 if d < 12 else (d + 4 if d < 16 else d - 8))

def k1():
    a = Asm()
    XN, XS, WQL = 0, 1168, 74752
    a("s_cmp_ge_u32 s2, 256\ns_cbranch_scc1 K1_END")
    a("s_load_dwordx8 s[4:11], s[0:1], 0\ns_load_dwordx2 s[12:13], s[0:1], 96")
    a("v_and_b32 v1, 63, v0\nv_lshrrev_b32 v2, 6, v0")
    a("v_readfirstlane_b32 s34, v2")
    a("s_and_b32 s32, s2, 7\ns_lshl_b32 s32, s32, 2\ns_lshr_b32 s33, s2, 6\ns_add_u32 s32, s32, s33\ns_bfe_u32 s33, s2, 0x30003")
    a("v_mul_u32_u24 v3, 7282, v0\nv_lshrrev_b32 v3, 16, v3")
    a("v_mul_u32_u24 v4, 9, v3\nv_sub_u32 v4, v0, v4")
    a("v_and_b32 v5, 48, v3\nv_and_b32 v6, 3, v3\nv_lshlrev_b32 v6, 2, v6\nv_bfe_u32 v7, v3, 2, 2")
    a("v_add3_u32 v5, v5, v6, v7\nv_mul_u32_u24 v5, 1152, v5\nv_lshl_add_u32 v8, v4, 4, v5")
    a("s_waitcnt lgkmcnt(0)")
    srd(a, 16, 4, XBYTES); srd(a, 20, 6, 576*576*2); srd(a, 28, 12, WS_SIZE)
    a("s_cmp_ge_u32 s33, 4\ns_cselect_b32 s24, s10, s8\ns_cselect_b32 s25, s11, s9")
    a(f"s_mov_b32 s26, {576*18*2}\ns_mov_b32 s27, 0x00020000")
    a("s_mul_i32 s35, s32, 73728")
    a("s_mul_i32 s36, s33, 144")
    a(f"s_lshl_b32 s37, s34, 10\ns_add_u32 s37, s37, {WQL}")
    a("s_cmp_eq_u32 s34, 8\ns_cbranch_scc1 K1_KV")
    a("v_lshrrev_b32 v9, 3, v0\nv_and_b32 v10, 7, v0\nv_lshlrev_b32 v10, 4, v10")
    a("v_mul_u32_u24 v11, 1152, v9\nv_add_u32 v11, v11, v10")
    X0 = 32
    for i in range(9):
        a(f"buffer_load_dwordx4 {vr(X0+4*i,4)}, v11, s[16:19], s35 offen offset:{128*i}")
    def wq_dma():
        for b in range(9):
            a(f"s_add_u32 m0, s37, {b*9216}\ns_add_u32 s38, s36, {b*73728}")
            a("buffer_load_dwordx4 v8, s[20:23], s38 offen lds")
    wq_dma()
    a(f"v_mul_u32_u24 v12, {XS}, v9\nv_add_u32 v12, v12, v10")
    a("s_lshr_b32 s39, s34, 2\ns_lshl_b32 s40, s39, 5\ns_and_b32 s41, s34, 3")
    a(f"v_and_b32 v13, 31, v1\nv_add_u32 v13, s40, v13\nv_mul_u32_u24 v13, {XS}, v13\nv_lshrrev_b32 v14, 5, v1\nv_lshl_add_u32 v13, v14, 4, v13")
    a("v_bfe_u32 v15, v1, 2, 2\nv_lshlrev_b32 v15, 2, v15\nv_lshl_add_u32 v15, v14, 1, v15\nv_mul_u32_u24 v15, 144, v15")
    a("v_bfe_u32 v16, v1, 4, 1\nv_and_b32 v17, 3, v1\nv_lshl_add_u32 v16, v16, 2, v17")
    a("s_and_b32 s42, s41, 1")
    a("v_add_u32 v16, s42, v16\nv_lshrrev_b32 v16, s42, v16")
    a(f"s_mul_i32 s43, s41, 36\ns_lshl_b32 s44, s42, 2\ns_sub_u32 s43, s43, s44\ns_add_u32 s43, s43, {WQL}")
    a("v_lshl_add_u32 v15, v16, 3, v15\nv_add_u32 v15, s43, v15")
    a(f"v_add_u32 v18, {18*2304}, v15")
    a("s_mov_b32 s45, 0x3f803f80")
    for i in range(8): a(f"v_mov_b32 v{20+i}, 0")
    stamp(a, 0)
    a("s_waitcnt vmcnt(9)")
    stamp(a, 1)
    for i in range(36):
        a(f"v_dot2_f32_bf16 v{20+i%4}, v{X0+i}, s45, v{20+i%4}")
        a(f"v_dot2_f32_bf16 v{24+i%4}, v{X0+i}, v{X0+i}, v{24+i%4}")
    a("v_add_f32 v20, v20, v21\nv_add_f32 v22, v22, v23\nv_add_f32 v24, v24, v25\nv_add_f32 v26, v26, v27")
    a("v_add_f32 v20, v20, v22\nv_add_f32 v24, v24, v26")
    for dp in ("quad_perm:[1,0,3,2]", "quad_perm:[2,3,0,1]", "row_half_mirror"):
        a(f"v_add_f32_dpp v20, v20, v20 {dp} row_mask:0xf bank_mask:0xf")
        a(f"v_add_f32_dpp v24, v24, v24 {dp} row_mask:0xf bank_mask:0xf")
    a(f"v_mul_f32 v20, {hx(f2u(1/576))}, v20\nv_mul_f32 v24, {hx(f2u(1/576))}, v24")
    a("v_fma_f32 v24, -v20, v20, v24\nv_max_f32 v24, 0, v24")
    a(f"v_add_f32 v24, {hx(f2u(1e-5))}, v24\nv_rsq_f32 v24, v24")
    a("v_mul_f32 v20, v20, v24\nv_sub_f32 v20, 0, v20")
    for i in range(0, 36, 2):
        for e in (0, 1):
            a(f"v_lshlrev_b32 v{70+2*e}, 16, v{X0+i+e}\nv_and_b32 v{71+2*e}, 0xffff0000, v{X0+i+e}")
        for e in range(4): a(f"v_fma_f32 v{70+e}, v{70+e}, v24, v20")
        for e in (0, 1): a(f"v_cvt_pk_bf16_f32 v{X0+i+e}, v{70+2*e}, v{71+2*e}")
    stamp(a, 2)
    a("s_barrier")
    stamp(a, 3)
    for i in range(9): a(f"ds_write_b128 v12, {vr(X0+4*i,4)} offset:{128*i}")
    a("s_waitcnt vmcnt(0) lgkmcnt(0)")
    stamp(a, 4)
    a("s_barrier")
    stamp(a, 5)
    A0, B0, ACC, D = 80, 96, 112, 4
    def rd(s):
        base, off = (15, s*2304) if s < 18 else (18, (s-18)*2304)
        a(f"ds_read_b128 {vr(B0+4*(s%D),4)}, v13 offset:{32*s}")
        a(f"ds_read_b64_tr_b16 {vr(A0+4*(s%D),2)}, v{base} offset:{off}")
        a(f"ds_read_b64_tr_b16 {vr(A0+4*(s%D)+2,2)}, v{base} offset:{off+144}")
    for s in range(D): rd(s)
    for s in range(36):
        left = min(D-1, 35-s)
        a(f"s_waitcnt lgkmcnt({3*left})")
        a(f"v_mfma_f32_32x32x16_bf16 {vr(ACC,16)}, {vr(A0+4*(s%D),4)}, {vr(B0+4*(s%D),4)}, {'0' if s == 0 else vr(ACC,16)}")
        if s + D < 36: rd(s + D)
    stamp(a, 6)
    a(f"s_mov_b32 s46, {hx(f2u(CS))}")
    a("s_lshl_b32 s47, s32, 5\ns_lshl_b32 s48, s33, 2\ns_add_u32 s47, s47, s48\ns_add_u32 s47, s47, s41\ns_lshl_b32 s47, s47, 1\ns_add_u32 s47, s47, s39")
    a(f"s_lshl_b32 s48, s47, 10\ns_add_u32 s48, s48, {WS_QM}\ns_lshl_b32 s49, s47, 7\ns_add_u32 s49, s49, {WS_QL}")
    a("v_lshlrev_b32 v2, 4, v1\nv_and_b32 v3, 31, v1\nv_lshlrev_b32 v3, 2, v3")
    for i in range(16): a(f"v_mul_f32 v{ACC+i}, s46, v{ACC+i}")
    a("s_cmp_eq_u32 s42, 1\ns_cbranch_scc1 K1_ODD")
    for i in range(4): a(f"v_cvt_pk_bf16_f32 v{20+i}, v{ACC+2*i}, v{ACC+2*i+1}")
    a(f"v_cvt_pk_bf16_f32 v24, v{ACC+8}, v{ACC+9}")
    a("buffer_store_dwordx4 v[20:23], v2, s[28:31], s48 offen")
    a("s_mov_b32 exec_hi, 0")
    a("buffer_store_dword v24, v3, s[28:31], s49 offen")
    a("s_endpgm")
    a("K1_ODD:")
    for i, r in enumerate((2, 4, 10, 12)): a(f"v_cvt_pk_bf16_f32 v{20+i}, v{ACC+r}, v{ACC+r+1}")
    a(f"v_cvt_pk_bf16_f32 v24, v{ACC+14}, v{ACC+15}")
    a("buffer_store_dwordx4 v[20:23], v2, s[28:31], s48 offen")
    a("s_mov_b32 exec_lo, 0")
    a("buffer_store_dword v24, v3, s[28:31], s49 offen")
    a("s_endpgm")
    a("K1_KV:")
    a("s_cmp_ge_u32 s2, 20\ns_cbranch_scc1 K1_NOZ")
    a(f"v_mov_b32 v16, 0\nv_mov_b32 v17, 0\nv_mov_b32 v18, 0\nv_mov_b32 v19, 0\nv_lshlrev_b32 v9, 4, v1\ns_lshl_b32 s38, s2, 10\ns_add_u32 s38, s38, {WS_FL}")
    a("buffer_store_dwordx4 v[16:19], v9, s[28:31], s38 offen")
    a("K1_NOZ:")
    if CODE_TOUCH:
        a("s_getpc_b64 s[50:51]")
        a("K1_PC:")
        a("s_add_u32 s50, s50, main_kernel-K1_PC\ns_addc_u32 s51, s51, 0")
        a("s_lshr_b32 s38, s2, 3\ns_lshl_b32 s38, s38, 12\nv_lshlrev_b32 v9, 6, v1\nv_add_u32 v9, s38, v9\nv_min_u32 v9, M_CODE_END-main_kernel-4, v9")
        a("global_load_dword v20, v9, s[50:51]")
    for m in range(3):
        a(f"v_add_u32 v9, {64*m}, v1\nv_mul_u32_u24 v10, 21846, v9\nv_lshrrev_b32 v10, 16, v10")
        a("v_mul_u32_u24 v11, 3, v10\nv_sub_u32 v11, v9, v11")
        a(f"v_mul_u32_u24 v10, 36, v10\nv_lshl_add_u32 v{12+m}, v11, 4, v10")
    for m in range(27):
        a(f"s_mov_b32 m0, {XN + 1024*m}\ns_mov_b32 s38, {(m//3)*64*36}")
        a(f"buffer_load_dwordx4 v{12+m%3}, s[24:27], s38 offen lds")
    wq_dma()
    a("v_lshrrev_b32 v2, 4, v1\nv_bfe_u32 v3, v1, 2, 2\nv_lshl_add_u32 v3, v2, 3, v3\nv_mul_u32_u24 v3, 48, v3\nv_and_b32 v4, 3, v1\nv_lshl_add_u32 v3, v4, 3, v3")
    a("s_and_b32 s39, s33, 3\ns_lshl_b32 s40, s39, 4")
    a(f"v_and_b32 v4, 15, v1\nv_add_u32 v5, s40, v4\nv_mul_u32_u24 v5, {XS}, v5\nv_lshl_add_u32 v5, v2, 4, v5")
    W0 = 24
    a("s_waitcnt vmcnt(9)")
    n = 0
    for s in range(18):
        for blk in range(2):
            for e in range(2):
                a(f"ds_read_b64_tr_b16 {vr(W0 + (s*2+blk)*4 + 2*e, 2)}, v3 offset:{(32*s + 4*e)*48 + 32*blk}")
                n += 1
                if n % 12 == 0: a("s_waitcnt lgkmcnt(4)")
    a("s_waitcnt lgkmcnt(0)\ns_barrier")
    a("s_waitcnt vmcnt(0)\ns_barrier")
    XB = 8
    for s in range(2): a(f"ds_read_b128 {vr(XB+4*s,4)}, v5 offset:{64*s}")
    a("s_cmp_ge_u32 s33, 4\ns_cbranch_scc1 K1_V")
    def kvloop(isV):
        for s in range(18):
            a(f"s_waitcnt lgkmcnt({1 if s < 17 else 0})")
            for blk in range(2):
                w = vr(W0 + (s*2+blk)*4, 4); x = vr(XB+4*(s%2), 4); d = vr(16+4*blk, 4)
                A, B = (x, w) if isV else (w, x)
                a(f"v_mfma_f32_16x16x32_bf16 {d}, {A}, {B}, {'0' if s == 0 else d}")
            if s + 2 < 18: a(f"ds_read_b128 {vr(XB+4*(s%2),4)}, v5 offset:{64*(s+2)}")
    kvloop(False)
    a(f"s_mul_i32 s41, s32, {REC}")
    a("s_lshr_b32 s42, s39, 1\ns_and_b32 s43, s39, 1\ns_lshl_b32 s43, s43, 4")
    a("v_add_u32 v6, s43, v4")
    a("v_and_b32 v7, 1, v2\nv_lshl_add_u32 v7, v7, 5, v6\nv_lshlrev_b32 v7, 4, v7\nv_lshrrev_b32 v8, 1, v2\nv_lshl_add_u32 v7, v8, 3, v7")
    a("s_lshl_b32 s44, s42, 10\ns_add_u32 s44, s44, s41")
    a("v_cvt_pk_bf16_f32 v8, v16, v17\nv_cvt_pk_bf16_f32 v9, v18, v19\nv_cvt_pk_bf16_f32 v10, v20, v21")
    a("buffer_store_dwordx2 v[8:9], v7, s[28:31], s44 offen")
    a("v_cmp_gt_u32 vcc, 16, v1\nv_cndmask_b32 v10, 0, v10, vcc")
    a("v_mov_b32 v11, 0\nv_dot2_f32_bf16 v11, v8, v8, v11\nv_dot2_f32_bf16 v11, v9, v9, v11\nv_dot2_f32_bf16 v11, v10, v10, v11")
    a("v_mov_b32 v12, v11\nv_permlane32_swap_b32 v11, v12\nv_add_f32 v11, v11, v12")
    a("v_mov_b32 v12, v11\nv_permlane16_swap_b32 v11, v12\nv_add_f32 v11, v11, v12")
    for dp in ("quad_perm:[1,0,3,2]", "quad_perm:[2,3,0,1]", "row_half_mirror", "row_mirror"):
        a(f"v_max_f32_dpp v11, v11, v11 {dp} row_mask:0xf bank_mask:0xf")
    a("s_lshl_b32 s45, s42, 7\ns_add_u32 s45, s45, s41\ns_add_u32 s45, s45, 2048")
    a("v_lshlrev_b32 v6, 2, v6\nv_mov_b32 v13, 0")
    a(f"s_lshl_b32 s46, s32, 2\ns_add_u32 s46, s46, s39\ns_lshl_b32 s46, s46, 2\ns_add_u32 s46, s46, {WS_KMAX}")
    a("s_mov_b64 exec, 0xffff")
    a("buffer_store_dword v10, v6, s[28:31], s45 offen")
    a("s_mov_b64 exec, 1")
    a("buffer_store_dword v11, v13, s[28:31], s46 offen")
    a("s_endpgm")
    a("K1_V:")
    kvloop(True)
    a(f"s_mul_i32 s41, s32, {REC}\ns_mul_i32 s42, s39, 640\ns_add_u32 s41, s41, s42\ns_add_u32 s41, s41, 2304")
    a("v_and_b32 v6, 1, v2\nv_mul_u32_u24 v6, 320, v6\nv_lshrrev_b32 v7, 1, v2\nv_lshl_add_u32 v6, v7, 3, v6")
    a("v_add_u32 v7, 4, v4\nv_subrev_u32 v8, 4, v4\nv_cmp_gt_u32 vcc, 12, v4\nv_cndmask_b32 v7, v7, v8, vcc")
    a("v_add_u32 v8, 12, v4\nv_cmp_gt_u32 vcc, 4, v4\nv_cndmask_b32 v7, v7, v8, vcc")
    a("v_lshl_add_u32 v7, v7, 4, v6")
    a("v_cvt_pk_bf16_f32 v8, v16, v17\nv_cvt_pk_bf16_f32 v9, v18, v19\nv_cvt_pk_bf16_f32 v10, v20, v21\nv_cvt_pk_bf16_f32 v11, v22, v23")
    a("buffer_store_dwordx2 v[8:9], v7, s[28:31], s41 offen")
    a("v_mov_b32 v12, 0x3f803f80\nv_cmp_eq_u32 vcc, 2, v4\nv_cndmask_b32 v10, v10, v12, vcc\nv_cndmask_b32 v11, v11, v12, vcc")
    a("v_cmp_ne_u32 vcc, 3, v4\nv_cndmask_b32 v10, 0, v10, vcc\nv_cndmask_b32 v11, 0, v11, vcc")
    a("v_add_u32 v13, 8, v4\nv_lshl_add_u32 v13, v13, 4, v6")
    a("s_mov_b32 exec_lo, 0x000f000f\ns_mov_b32 exec_hi, 0x000f000f")
    a("buffer_store_dwordx2 v[10:11], v13, s[28:31], s41 offen")
    a("K1_END:")
    a("s_endpgm")
    return a, dict(grid=256, block=576, lds=157696)

KERNELS = [("qkv_kernel", k1)]

WS_TS = 0x8000000
STAMPCYC = False
STAMPSEL = None
def stamp(a, n):
    a(f"; STAMP {n}")
def instrument(a, kidx):
    from asmlib import I
    items = a.items
    out = []
    n = Asm()
    n("s_memrealtime s[96:97]\ns_memtime s[92:93]\ns_load_dwordx2 s[98:99], s[0:1], 96\nv_lshrrev_b32 v1, 6, v0\ns_nop 0\nv_readfirstlane_b32 s100, v1\ns_lshl_b32 s101, s2, 4\ns_nop 0\ns_add_u32 s100, s100, s101\ns_lshl_b32 s100, s100, 6")
    n(f"s_add_u32 s100, s100, {WS_TS + kidx*0x100000}\ns_waitcnt lgkmcnt(0)")
    for i in range(8): n(f"s_mov_b32 s{74+2*i}, {'s92' if STAMPCYC else 's96'}")
    out += n.items
    sel = STAMPSEL or [str(i) for i in range(8)]
    for it in items:
        if isinstance(it, str) and it.startswith("; STAMP"):
            nm = it.split()[2]
            if nm in sel:
                k = sel.index(nm)
                out.append(I(f"{'s_memtime' if STAMPCYC else 's_memrealtime'} s[{74+2*k}:{75+2*k}]"))
            continue
        if isinstance(it, I) and it.op == 's_endpgm':
            n = Asm()
            n("s_waitcnt vmcnt(0)\ns_memrealtime s[94:95]\ns_memtime s[90:91]\ns_mov_b64 exec, 1\ns_waitcnt lgkmcnt(0)\ns_sub_u32 s90, s90, s92\nv_mov_b32 v4, s96\nv_mov_b32 v5, s94\nv_mov_b32 v6, s90\nv_mov_b32 v7, " + str(int(STAMPCYC)) + "\nv_mov_b32 v8, s100")
            n("global_store_dwordx4 v8, v[4:7], s[98:99]")
            for q in range(2):
                for e in range(4):
                    if STAMPCYC: n(f"s_sub_u32 s{74+2*(4*q+e)}, s{74+2*(4*q+e)}, s92")
                    n(f"v_mov_b32 v{12+4*q+e}, s{74+2*(4*q+e)}")
                n(f"global_store_dwordx4 v8, v[{12+4*q}:{15+4*q}], s[98:99] offset:{16+16*q}")
            out += n.items
        out.append(it)
    a.items = out

def build(kernels, instr=False):
    hdr = open(f"cdna_kernels/{NAME}.s.ref").read().split("; Override launch")[0]
    launches = ""; body = ""; desc = ""
    for name, fn in kernels:
        a, cfg = fn()
        if instr: instrument(a, [k for k, _ in kernels].index(name))
        a.fix()
        nv = a.maxreg('v') + 1; na = a.maxreg('a') + 1; ns = a.maxreg('s') + 1
        acc = (nv + 3) // 4 * 4
        tot = acc + na if na else nv
        launches += f"; @launch kernel={name} grid=({cfg['grid']},1,1) block=({cfg['block']},1,1) lds={cfg['lds']}\n"
        body += f".globl {name}\n.p2align 8\n.type {name},@function\n{name}:\n" + a.text()
        desc += f""".p2align 6
.amdhsa_kernel {name}
  .amdhsa_next_free_vgpr {tot}
  .amdhsa_next_free_sgpr {ns}
  .amdhsa_accum_offset {acc}
  .amdhsa_group_segment_fixed_size 0
  .amdhsa_kernarg_size 104
  .amdhsa_user_sgpr_count 2
  .amdhsa_user_sgpr_kernarg_segment_ptr 1
  .amdhsa_system_sgpr_workgroup_id_x 1
.end_amdhsa_kernel
"""
        print(f"{name}: vgpr {nv} agpr {na} sgpr {ns}", file=sys.stderr)
    return hdr + launches + '.amdgcn_target "amdgcn-amd-amdhsa--gfx950"\n.text\n' + body + '.section .rodata,"a"\n' + desc

if __name__ == "__main__":
    out = sys.argv[1] if len(sys.argv) > 1 else f"cdna_kernels/{NAME}.s"
    open(out, "w").write(build(KERNELS))
```

```python
from gen import *
import gen
SX, SWO, SW1, SW2, SWS, SB1, SB2, SOUT = 4, 8, 12, 16, 20, 24, 28, 32
def sr(b): return f"s[{b}:{b+3}]"
S_W, S_C, S_J, S_FC, S_TBM, S_ODD = 36, 37, 38, 39, 40, 41

import os
EXP = os.environ.get('EXP', '')
def mlp(a, vm):
    from fused import poll
    BIASL, RING, SLOT = 0, 2048, 36864
    B0 = 112
    ACC = [48, 64, 80, 96]
    AH = 0; AA, NA = 72, 8
    D = 6
    VA = 4
    VS, V1P, V1S, V2, VFL, VB, VR, VMU = 12, 13, 14, 15, 16, 17, 18, 19
    VST = 2
    TMP, CV, BQ = 20, 28, 36
    V2W, VT, VF, VO = 44, 45, 46, 47
    FA, FB, P8 = 176, 192, 232
    VP, A8, H8, B8 = 248, 249, 251, 252
    HR, BR = 64, 72
    V8, V8O, V8B, VOUT, VB2 = 80, 81, 82, 83, 84
    a("v_lshrrev_b32 v20, 3, v1\nv_and_b32 v21, 7, v1\nv_bfe_u32 v22, v1, 4, 1\nv_lshlrev_b32 v22, 2, v22\nv_xor_b32 v21, v21, v22\nv_lshlrev_b32 v21, 4, v21")
    a(f"v_mul_u32_u24 v{V1P}, 9216, v20\nv_add_u32 v{V1P}, v{V1P}, v21")
    a(f"s_mul_i32 s45, s{S_FC}, 576\ns_lshl_b32 s42, s{S_ODD}, 6\ns_add_u32 s42, s42, s45\ns_mul_i32 s3, s{S_W}, {72*9216}\ns_add_u32 s42, s42, s3")
    a(f"s_mul_i32 s44, s{S_W}, 9216\ns_add_u32 s44, s44, {RING}")
    def dma(st, i):
        dst = (st % 4) * SLOT + i * 1024
        if st < 8:
            p, kh = st // 2, st % 2
            return [f"s_add_u32 m0, s44, {dst}", f"s_add_u32 s58, s42, {(288*kh + 8*i)*9216 + 128*p}"], f"buffer_load_dwordx4 v{V1P}, {sr(SW1)}, s58 offen lds"
        if st == 8:
            return [f"s_add_u32 m0, s44, {dst}", f"s_add_u32 s58, s43, {16*i*9216}"], f"buffer_load_dwordx4 v{V1S}, {sr(SW1)}, s58 offen lds"
        return [f"s_add_u32 m0, s44, {dst}"], f"buffer_load_dwordx4 v{V2W}, {sr(SW2)}, s{48+i} offen lds"
    for i in range(9):
        s_, v_ = dma(0, i)
        for x in s_: a(x)
        a(v_); vm.add(('d', 0))
    a(vm.wait('hs'))
    a("s_mov_b64 exec, 1")
    a(f"buffer_store_dword v45, v44, {sr(SWS)}, s72 offen sc1"); vm.add('fl')
    a("s_mov_b64 exec, -1")
    gen.stamp(a, "m0")
    a(f"s_mul_i32 s45, s{S_FC}, 288")
    a(f"s_lshl_b32 s3, s{S_ODD}, 5\ns_add_u32 s3, s3, s45\nv_add_u32 v24, s3, v0\nv_lshlrev_b32 v24, 1, v24")
    a(f"s_xor_b32 s3, s{S_ODD}, 1\ns_lshl_b32 s3, s3, 8\ns_add_u32 s3, s3, s45\nv_add_u32 v25, s3, v3\nv_lshlrev_b32 v25, 1, v25")
    a(f"buffer_load_ushort v26, v24, {sr(SB1)}, 0 offen\nbuffer_load_ushort v27, v25, {sr(SB1)}, 0 offen"); vm.add('b'); vm.add('b')
    for i in range(9):
        s_, v_ = dma(1, i)
        for x in s_: a(x)
        a(v_); vm.add(('d', 1))
    a(f"v_mul_u32_u24 v{V2}, 1152, v20\nv_add_u32 v{V2}, v{V2}, v21")
    a(f"v_lshrrev_b32 v20, 2, v1\nv_and_b32 v21, 3, v1\nv_mul_u32_u24 v{V1S}, 9216, v20\nv_lshl_add_u32 v{V1S}, v21, 4, v{V1S}")
    a(f"s_xor_b32 s43, s{S_ODD}, 1\ns_lshl_b32 s43, s43, 9\ns_mul_i32 s3, s{S_FC}, 576\ns_add_u32 s43, s43, s3\ns_mul_i32 s3, s{S_W}, {144*9216}\ns_add_u32 s43, s43, s3")
    a(f"s_mul_i32 s67, s{S_W}, 72\ns_lshl_b32 s3, s{S_ODD}, 5\ns_add_u32 s67, s67, s3")
    for i in range(9):
        a(f"s_add_u32 s68, s67, {8*i}\ns_sub_u32 s69, s68, 288\ns_cmp_ge_u32 s68, 288\ns_cselect_b32 s68, s69, s68\ns_add_u32 s68, s68, s45\ns_mul_i32 s{48+i}, s68, 1152")
    a(f"s_mul_i32 s67, s{S_TBM}, 36864\ns_add_u32 s46, s67, {WS_H}")
    a(f"s_mul_i32 s47, s{S_FC}, {64*36864}\ns_add_u32 s47, s47, s67\ns_add_u32 s47, s47, {WS_PART}")
    a(f"s_lshl_b32 s66, s{S_FC}, 11\ns_add_u32 s66, s66, s67\ns_add_u32 s66, s66, {WS_PART}")
    a(f"s_mul_i32 s57, s{S_TBM}, 6144\ns_add_u32 s57, s57, {WS_ST}")
    a(f"s_lshr_b32 s64, s{S_FC}, 1\ns_lshl_b32 s65, s{S_TBM}, 7\ns_add_u32 s72, s65, {WS_FH}\ns_add_u32 s65, s65, {WS_FP}")
    a(f"s_mov_b32 s59, {hx(f2u(ALPHA))}\ns_mov_b32 s60, {hx(f2u(GA))}\ns_mov_b32 s61, 0x00003f80\ns_mov_b32 s62, 0x3f800000")
    a("v_lshrrev_b32 v23, 5, v1\nv_bfe_u32 v20, v1, 2, 2\nv_lshl_add_u32 v20, v23, 2, v20")
    a("v_bfe_u32 v21, v1, 4, 1\nv_and_b32 v22, 3, v1\nv_lshlrev_b32 v22, 3, v22\nv_lshl_add_u32 v21, v21, 5, v22")
    a(f"v_lshl_add_u32 v{VS}, v20, 6, v21\nv_add_u32 v{VS}, {RING + (8 % 4)*SLOT}, v{VS}")
    a("v_lshl_add_u32 v22, v20, 7, v21\nv_bfe_u32 v21, v1, 3, 1\nv_lshl_add_u32 v20, v21, 6, v22\nv_xor_b32 v21, 64, v20")
    for sl in range(4):
        a(f"v_add_u32 v{VA+2*sl}, {RING + sl*SLOT}, v20\nv_add_u32 v{VA+2*sl+1}, {RING + sl*SLOT}, v21")
    a(f"s_lshl_b32 s3, s{S_ODD}, 6\nv_xor_b32 v{VO}, s3, v{VA+2*(17%4)}\nv_xor_b32 v{VF}, 64, v{VO}")
    a(f"v_lshlrev_b32 v{VB}, 4, v23\nv_and_b32 v{VFL}, 15, v1\nv_lshlrev_b32 v{VFL}, 2, v{VFL}")
    a(f"v_mul_u32_u24 v22, {12*256}, v23\nv_lshl_add_u32 v22, v3, 3, v22")
    a(vm.wait('b'))
    a("v_lshlrev_b32 v26, 16, v26\nv_lshlrev_b32 v27, 16, v27\nv_mul_f32 v26, s59, v26\nv_mul_f32 v27, s59, v27")
    a("v_lshlrev_b32 v24, 2, v0\nv_lshlrev_b32 v25, 2, v3")
    a(f"ds_write_b32 v24, v26 offset:{BIASL}\nds_write_b32 v25, v27 offset:{BIASL+1024}")
    poll(a, "M_PH", VFL, "s72", 23, "v_cmp_ne_u32 vcc, 1, v23")
    gen.stamp(a, "m1")
    vm.l = []
    for i in range(12): a(f"buffer_load_dwordx2 {vr(48+2*i,2)}, v22, {sr(SWS)}, s57 offen offset:{256*i} sc1"); vm.add('st')
    def hload(s):
        if s % 4 == 0: a(f"s_add_u32 s73, s46, {(s//4)*4096}")
        a(f"buffer_load_dwordx4 {vr(B0+4*s,4)}, v{VST}, {sr(SWS)}, s73 offen offset:{(s%4)*1024} sc1"); vm.add(('h', s))
    HPRE = 8
    for s in range(HPRE): hload(s)
    a("s_waitcnt lgkmcnt(0)\ns_barrier")
    a(vm.wait('st'))
    for i in range(1, 12):
        a(f"v_add_f32 v48, v48, v{48+2*i}\nv_add_f32 v49, v49, v{49+2*i}")
    a("v_mov_b32 v50, v48\nv_mov_b32 v51, v49\nv_permlane32_swap_b32 v48, v50\nv_permlane32_swap_b32 v49, v51\nv_add_f32 v48, v48, v50\nv_add_f32 v49, v49, v51")
    a(f"v_mul_f32 v48, {hx(f2u(1/576))}, v48\nv_mul_f32 v49, {hx(f2u(1/576))}, v49")
    a(f"v_sub_f32 v{VMU}, 0, v48")
    a("v_fma_f32 v49, -v48, v48, v49\nv_max_f32 v49, 0, v49")
    a(f"v_add_f32 v50, {hx(f2u(1e-5))}, v49\nv_rsq_f32 v50, v50")
    a(f"v_mul_f32 v49, v49, v50\nv_mul_f32 v49, v49, v50\nv_add_f32 v49, {hx(f2u(1e-5))}, v49\nv_rsq_f32 v49, v49")
    a(f"v_mul_f32 v49, v49, v50\nv_mul_f32 v{VR}, s59, v49")
    slots = []
    for st in range(18):
        sl = st % 4
        if st < 8:
            p, kh = st // 2, st % 2
            for ks in range(18):
                for blk in range(2):
                    s = 18*kh + ks
                    slots.append(dict(st=st, rd=(VA+2*sl+blk, ks*2048, ks*2048+1024), acc=ACC[2*(p%2)+blk], b=vr(B0+4*s,4), first=(s == 0), last=(s == 35), bi=2*p+blk, need=('n', s)))
        elif st == 8:
            for s in range(36):
                slots.append(dict(st=st, rd=(VS, s*1024, s*1024+512), acc=ACC[0], b=vr(B0+4*s,4), first=(s == 0), last=(s == 35), bi=8, need=None))
        elif st < 17:
            t = st - 9
            for ks in range(18):
                for blk in range(2):
                    slots.append(dict(st=st, rd=(VA+2*sl+blk, ks*2048, ks*2048+1024), acc=B0+16*(2*(t%2)+blk), b=ar(AH+4*ks,4), first=(ks == 0), last=(ks == 17), t=t, blk=blk, need=('g', ks)))
        else:
            for blk in range(2):
                for ks in range(18):
                    slots.append(dict(st=st, rd=((VF, VO)[blk], ks*2048, ks*2048+1024), acc=B0+16*blk, b=ar(AH+4*ks,4), first=(ks == 0), last=(ks == 17), t=8, blk=blk, need=None))
    N = len(slots)
    Q = []
    def V(text, ready=-1, cost=4, prov=None): return [cost, text, ready, prov, None]
    def X(fn, ready=-1, cost=0, prov=None): return [cost, 'FN', ready, prov, fn]
    for s in range(36):
        items = []
        if s % 2 == 0: items.append(X(lambda s=s: a(vm.wait(('h', min(s+1, 35))))))
        for d in range(4):
            r = B0+4*s+d; t = TMP + 2*d
            items.append(V(f"v_dot2_f32_bf16 v{t}, v{r}, s61, v{VMU}"))
            items.append(V(f"v_dot2_f32_bf16 v{t+1}, v{r}, s62, v{VMU}"))
        for d in range(4):
            r = B0+4*s+d; t = TMP + 2*d
            items.append(V(f"v_cvt_pk_bf16_f32 v{r}, v{t}, v{t+1}"))
        items[-1][3] = ('n', s)
        Q += items
    accbusy = set(); provided = set()
    ds = []; ds_done = [0]
    bias_order = [(bi, q) for bi in range(9) for q in range(4)]
    bias_next = [0]; pend_bias = []
    def bias_load():
        bi, q = bias_order[bias_next[0]]; bias_next[0] += 1
        a(f"ds_read_b128 {vr(BQ+4*(q%2),4)}, v{VB} offset:{BIASL + (32*bi+8*q)*4}"); ds.append(('b', bi, q))
    def lwait(tag):
        idx = max(i for i, t in enumerate(ds) if t == tag)
        if idx < ds_done[0]: return
        ds_done[0] = idx + 1
        n = len(ds) - 1 - idx; assert n <= 15
        a(f"s_waitcnt lgkmcnt({n})")
    def bw(bi, q):
        if ('b', bi, q) not in ds:
            while pend_bias: pend_bias.pop(); bias_load()
        lwait(('b', bi, q))
    def bl():
        if bias_next[0] + len(pend_bias) < 36: pend_bias.append(1)
    def gelu(acc, bi, ready):
        it = []
        for q in range(4):
            bq = BQ + 4*(q % 2)
            R = [acc+4*q+e for e in range(4)]; T = [TMP+4*(q%2)+e for e in range(4)]
            it.append(X(lambda bi=bi, q=q: bw(bi, q), ready))
            for e in range(4): it.append(V(f"v_fma_f32 v{R[e]}, v{R[e]}, v{VR}, v{bq+e}", ready))
            it.append(X(bl, ready))
            for e in range(4): it.append(V(f"v_fma_f32 v{T[e]}, v{R[e]}, v{R[e]}, s60", ready))
            for e in range(4): it.append(V(f"v_mul_f32 v{T[e]}, v{T[e]}, v{R[e]}", ready))
            for e in range(4): it.append(V(f"v_exp_f32 v{T[e]}, v{T[e]}", ready, 8))
            for e in range(4): it.append(V(f"v_add_f32 v{T[e]}, 1.0, v{T[e]}", ready))
            for e in range(4): it.append(V(f"v_rcp_f32 v{T[e]}, v{T[e]}", ready, 8))
            for e in range(4): it.append(V(f"v_mul_f32 v{T[e]}, v{T[e]}, v{R[e]}", ready))
            for e in range(2): it.append(V(f"v_cvt_pk_bf16_f32 v{CV+e}, v{T[2*e]}, v{T[2*e+1]}", ready))
            for e in range(2): it.append(V(f"v_accvgpr_write_b32 a{AH+8*bi+2*q+e}, v{CV+e}", ready))
            if q % 2 == 1: it[-1][3] = ('g', 2*bi + q//2)
        it.append(X(lambda: accbusy.discard(acc), ready))
        return it
    def npair_to(sreg, t):
        if t == 0: a(f"s_mov_b32 {sreg}, 8")
        else: a(f"s_add_u32 {sreg}, s64, {t}\ns_and_b32 {sreg}, {sreg}, 7")
    def store_part(t, blk, hs):
        if blk == 0 and hs == 0:
            npair_to("s63", t)
            a("s_lshl_b32 s63, s63, 12\ns_add_u32 s63, s63, s47")
            if t == 8: a(f"s_xor_b32 s3, s{S_ODD}, 1\ns_lshl_b32 s3, s3, 11\ns_add_u32 s63, s63, s3")
        a(f"buffer_store_dwordx4 {vr(CV+4*hs,4)}, v{VST}, {sr(SWS)}, s63 offen offset:{(2*blk+hs)*1024}{'' if 'plainst' in EXP else ' sc1'}"); vm.add(('s', t))
    def outp(acc, t, blk, ready):
        it = []
        for hs in range(2):
            for e in range(4): it.append(V(f"v_cvt_pk_bf16_f32 v{CV+4*hs+e}, v{acc+8*hs+2*e}, v{acc+8*hs+2*e+1}", ready))
            it.append(X(lambda t=t, blk=blk, hs=hs: store_part(t, blk, hs), ready, 8))
        it.append(X(lambda: accbusy.discard(acc), ready))
        return it
    spins = []
    def publish(val):
        a(f"s_lshl_b32 s3, s{S_FC}, 2\nv_mov_b32 v{TMP}, s3\nv_mov_b32 v{TMP+1}, {val}\ns_mov_b64 exec, 1")
        a(f"buffer_store_dword v{TMP+1}, v{TMP}, {sr(SWS)}, s65 offen sc1"); vm.add('fl')
        a("s_mov_b64 exec, -1")
    def check(k):
        if k == 0: cmpi = f"v_cmp_gt_u32 vcc, 1, v{VP}\ns_cmp_lg_u64 vcc, 0"
        else: cmpi = f"v_cmp_ge_u32 s[68:69], {k+1}, v{VT}\nv_cmp_lt_u32 vcc, v{VP}, v{VT}\ns_and_b64 vcc, vcc, s[68:69]"
        a(cmpi)
        if 'nospin' not in EXP: a(f"s_cbranch_scc1 M_SP{k}")
        a(f"M_SR{k}:")
        spins.append((k, cmpi))
    def fload(k, buf):
        a(f"s_sub_u32 s3, s64, {k}\ns_and_b32 s3, s3, 7\ns_mul_i32 s3, s3, {2*64*36864}\ns_add_u32 s70, s3, s66\ns_add_u32 s71, s70, {64*36864}")
        for e in range(2):
            for hs in range(2):
                a(f"buffer_load_dwordx4 {vr(buf+8*e+4*hs,4)}, v{VST}, {sr(SWS)}, s{70+e} offen offset:{1024*hs} sc1"); vm.add(('f', k))
    def facc(buf, n, first, ready=-1):
        it = []
        for e in range(n):
            for d in range(8):
                c = '0' if (first and e == 0) else None
                it.append(V(f"v_dot2_f32_bf16 v{FA+2*d}, v{buf+8*e+d}, s61, {c or 'v%d' % (FA+2*d)}", ready))
                it.append(V(f"v_dot2_f32_bf16 v{FA+2*d+1}, v{buf+8*e+d}, s62, {c or 'v%d' % (FA+2*d+1)}", ready))
        return it
    def g2setup():
        it = []
        T = [f"v_and_b32 v{VT}, 15, v1", f"v_lshrrev_b32 v{TMP}, 1, v{VT}", f"v_sub_u32 v{TMP}, s64, v{TMP}", f"v_add_u32 v{TMP}, 7, v{TMP}", f"v_and_b32 v{TMP}, 7, v{TMP}",
             f"v_add_u32 v{TMP}, 2, v{TMP}", f"v_cmp_ne_u32 vcc, s{S_FC}, v{VT}", f"v_cndmask_b32 v{VT}, 0, v{TMP}, vcc",
             f"s_and_b32 s67, s{S_FC}, 3\ns_lshl_b32 s67, s67, 8\nv_lshl_add_u32 v{V8}, v1, 2, s67",
             f"v_and_b32 v{TMP}, 1, v1", f"v_bfe_u32 v{TMP+1}, v1, 1, 1", f"v_lshlrev_b32 v{TMP}, 2, v{TMP}", f"v_lshl_add_u32 v{TMP}, v{TMP+1}, 4, v{TMP}",
             f"s_bfe_u32 s67, s{S_FC}, 0x10001\ns_lshl_b32 s67, s67, 3\ns_lshr_b32 s68, s{S_FC}, 2\ns_lshl_b32 s68, s68, 5\ns_add_u32 s67, s67, s68\ns_add_u32 s67, s67, 1024\nv_add_u32 v{V8B}, s67, v{TMP}",
             f"v_lshrrev_b32 v{TMP}, 2, v1", f"s_lshl_b32 s67, s{S_ODD}, 4\nv_add_u32 v{TMP}, s67, v{TMP}", f"v_mul_u32_u24 v{TMP}, 1152, v{TMP}", f"v_add_u32 v{V8O}, v{TMP}, v{V8B}",
             f"v_lshrrev_b32 v{TMP}, 5, v1", f"v_mul_u32_u24 v{VOUT}, 1152, v3", f"v_lshl_add_u32 v{VOUT}, v{TMP}, 4, v{VOUT}", f"v_lshlrev_b32 v{VB2}, 3, v{TMP}"]
        for x in T: it.append(V(x))
        return it
    def load8():
        a(f"s_lshr_b32 s3, s{S_FC}, 2\ns_lshl_b32 s3, s3, 10\ns_add_u32 s3, s3, 32768\ns_add_u32 s70, s46, s3\ns_add_u32 s71, s70, {WS_PART - WS_H}")
        a(f"buffer_load_dword v{H8}, v{V8}, {sr(SWS)}, s70 offen sc1"); vm.add('p8')
        a(f"buffer_load_dword v{B8}, v{V8B}, {sr(SB2)}, 0 offen"); vm.add('p8')
        for f in range(16):
            a(f"buffer_load_dword v{P8+f}, v{V8}, {sr(SWS)}, s71 offen sc1"); vm.add('p8')
            if f < 15: a(f"s_add_u32 s71, s71, {64*36864}")
    def fin8(ready):
        it = []
        for f in range(16):
            it.append(V(f"v_dot2_f32_bf16 v{A8}, v{P8+f}, s61, {'0' if f == 0 else 'v%d' % A8}", ready))
            it.append(V(f"v_dot2_f32_bf16 v{A8+1}, v{P8+f}, s62, {'0' if f == 0 else 'v%d' % (A8+1)}", ready))
        for e in range(2): it.append(V(f"v_mul_f32 v{A8+e}, {hx(f2u(1/ALPHA))}, v{A8+e}", ready))
        for src in (B8, H8):
            it.append(V(f"v_dot2_f32_bf16 v{A8}, v{src}, s61, v{A8}", ready)); it.append(V(f"v_dot2_f32_bf16 v{A8+1}, v{src}, s62, v{A8+1}", ready))
        it.append(V(f"v_cvt_pk_bf16_f32 v{A8}, v{A8}, v{A8+1}", ready))
        def st():
            a(f"s_mul_i32 s3, s{S_TBM}, 36864")
            a(f"buffer_store_dword v{A8}, v{V8O}, {sr(SOUT)}, s3 offen"); vm.add('o8')
        it.append(X(st, ready, 8))
        return it
    def loadres():
        a(f"s_lshl_b32 s3, s{S_FC}, 11\ns_add_u32 s70, s3, s46\ns_lshl_b32 s71, s{S_FC}, 6")
        for hs in range(2): a(f"buffer_load_dwordx4 {vr(HR+4*hs,4)}, v{VST}, {sr(SWS)}, s70 offen offset:{1024*hs} sc1"); vm.add('res')
        for q in range(4): a(f"buffer_load_dwordx2 {vr(BR+2*q,2)}, v{VB2}, {sr(SB2)}, s71 offen offset:{16*q}"); vm.add('res')
    def emit(item):
        c, t, _, prov, fn = item
        if t == 'FN': fn()
        else: a(t)
        if prov: provided.add(prov)
    def rdA(m):
        r, o0, o1 = slots[m]['rd']; d = AA + 4*(m % NA)
        a(f"ds_read_b64_tr_b16 {ar(d,2)}, v{r} offset:{o0}"); ds.append(('a', m, 0))
        a(f"ds_read_b64_tr_b16 {ar(d+2,2)}, v{r} offset:{o1}"); ds.append(('a', m))
    for m in range(D): rdA(m)
    bias_load(); bias_load()
    dq = []
    def queue_dma(st):
        if st < 18:
            if st >= 9:
                npair_to("s3", st - 9)
                a(f"s_lshl_b32 s3, s3, 7\nv_add_u32 v{V2W}, s3, v{V2}")
            for i in range(9): dq.append((st, ) + dma(st, i))
    hnext = HPRE
    stall = 0
    gen.stamp(a, "m2")
    for m in range(N):
        sl = slots[m]
        pos = m % 36; st = sl['st']; tau = st - 9
        if m == 72: gen.stamp(a, "m3")
        if m == 324: gen.stamp(a, "m4")
        if m == 396: gen.stamp(a, "m5")
        forced = 0
        while (sl['need'] and sl['need'] not in provided) or (sl['first'] and sl['acc'] in accbusy):
            it = Q.pop(0); emit(it); forced += it[0]
        stall += forced
        lwait(('a', m))
        acc = vr(sl['acc'], 16)
        a(f"v_mfma_f32_32x32x16_bf16 {acc}, {ar(AA+4*(m%NA),4)}, {sl['b']}, {'0' if sl['first'] else acc}")
        if sl['last'] and m < N - 1:
            accbusy.add(sl['acc'])
            Q += gelu(sl['acc'], sl['bi'], m + 2) if 'bi' in sl else outp(sl['acc'], sl['t'], sl['blk'], m + 2)
            if sl.get('bi') == 8: Q += g2setup()
        budget = 16
        if m % 2 == 1 and m + 1 < N: lwait(('a', min(m + 2, N - 1)))
        elif dq and dq[0][1]: a(dq[0][1].pop(0))
        nm = m + D
        if nm < N:
            if slots[nm]['st'] != slots[nm-1]['st']:
                nst = slots[nm]['st']
                assert not dq
                if nst >= 2: a(vm.wait(('d', nst)))
                a("s_barrier")
                queue_dma(nst + 2)
                budget -= 8
            rdA(nm)
        while pend_bias: pend_bias.pop(); bias_load(); budget -= 4
        if hnext < 36:
            hload(hnext); hnext += 1; budget -= 4
            if hnext == 36: queue_dma(2) if False else None
        if m == 0: queue_dma(2)
        if dq and m % 3 == 2:
            dst_, s_, v_ = dq.pop(0)
            for x in s_: a(x); budget -= 4
            a(v_); vm.add(('d', dst_)); budget -= 4
        if 'noproto' in EXP: tau = -1
        if tau >= 2 and pos == 1:
            assert vm.l.count(('s', tau - 2)) == 4
            a(f"buffer_load_dword v{VP}, v{VFL}, {sr(SWS)}, s65 offen sc1"); vm.add(('F', tau)); budget -= 4
        if tau >= 2 and pos == 14:
            assert not any(x[1] != 'FN' and f"v{TMP}," in x[1] for x in Q)
            a(vm.wait(('F', tau)))
            if 'nopub' not in EXP: publish(tau - 1)
            if 'nofload' in EXP: tau = -1
            if tau == 3: loadres()
            if tau == 4: check(0); load8()
            if tau == 5: Q += fin8(m + 1)
            if tau >= 6: Q += facc(FB + 16*((tau-1) % 2), 2, tau == 6, m + 1)
            if tau >= 5: check(tau - 4); fload(tau - 4, FB + 16*(tau % 2))
            budget = 0
        while Q and Q[0][2] <= m and Q[0][0] <= budget:
            it = Q.pop(0); emit(it); budget -= it[0]
    while Q: emit(Q.pop(0))
    print("mlp forced VALU cycles:", stall, file=sys.stderr)
    gen.stamp(a, "m6")
    a("s_waitcnt vmcnt(0)")
    publish(9)
    for it in facc(FB, 2, False): emit(it)
    OWN = B0 + 16
    for i in range(16): a(f"v_add_f32 v{FA+i}, v{FA+i}, v{OWN+i}")
    poll(a, "M_PF", VFL, "s65", VP, f"v_cmp_lt_u32 vcc, v{VP}, v{VT}")
    gen.stamp(a, "m7")
    vm.l = []
    fload(5, FB); fload(6, FB + 16); fload(7, FB + 32)
    a(f"s_xor_b32 s3, s{S_FC}, 1\ns_mul_i32 s3, s3, {64*36864}\ns_add_u32 s70, s3, s66")
    for hs in range(2): a(f"buffer_load_dwordx4 {vr(FB+48+4*hs,4)}, v{VST}, {sr(SWS)}, s70 offen offset:{1024*hs} sc1"); vm.add(('f', 8))
    a(f"s_mul_i32 s70, s{S_TBM}, 36864\ns_lshl_b32 s3, s{S_FC}, 6\ns_add_u32 s70, s70, s3\ns_mov_b32 s71, {hx(f2u(1/ALPHA))}")
    for k, buf, n in ((5, FB, 2), (6, FB+16, 2), (7, FB+32, 2), (8, FB+48, 1)):
        a(vm.wait(('f', k)))
        for it in facc(buf, n, False): emit(it)
    for i in range(16): a(f"v_mul_f32 v{FA+i}, s71, v{FA+i}")
    for it in facc(BR, 1, False): emit(it)
    for it in facc(HR, 1, False): emit(it)
    for d in range(8): a(f"v_cvt_pk_bf16_f32 v{CV+d}, v{FA+2*d}, v{FA+2*d+1}")
    for hs in range(2):
        a(f"v_permlane32_swap_b32 v{CV+4*hs}, v{CV+4*hs+2}\nv_permlane32_swap_b32 v{CV+4*hs+1}, v{CV+4*hs+3}")
        a(f"buffer_store_dwordx4 {vr(CV+4*hs,4)}, v{VOUT}, {sr(SOUT)}, s70 offen offset:{32*hs}")
    a("s_endpgm")
    for k, cmpi in spins:
        a(f"M_SP{k}:")
        a("s_mov_b32 s3, 0x8000")
        a(f"M_SL{k}:")
        a("s_sleep 1")
        a(f"buffer_load_dword v{VP}, v{VFL}, {sr(SWS)}, s65 offen sc1\ns_waitcnt vmcnt(0)")
        a(cmpi)
        a(f"s_cbranch_scc0 M_SR{k}")
        a("s_sub_u32 s3, s3, 1\ns_cmp_lg_u32 s3, 0")
        a(f"s_cbranch_scc1 M_SL{k}")
        a(f"s_branch M_SR{k}")
```

```python
import sys, math, struct
from asmlib import Asm

NAME = "sequential_preLN__grouped_kv_mqa__mixer_channel_mlp__prompt"
def f2u(x): return struct.unpack('<I', struct.pack('<f', x))[0]
def hx(x): return f"0x{x & 0xffffffff:08x}"

REC = 4864
WS_KV = 0
WS_KMAX = 0x28000
WS_QM = 0x100000
WS_QL = 0x300000
WS_O = 0x400000
WS_H = 0x700000
WS_ST = 0xA00000
WS_PART = 0x1000000
WS_SIZE = 0x10000000
XBYTES = 2048 * 576 * 2
CS = math.log2(math.e) / math.sqrt(18.0)
C1 = -2.0 * math.sqrt(2.0 / math.pi) * math.log2(math.e)
C2 = C1 * 0.044715
ALPHA = -((-C2) ** (1.0 / 3.0))
GA = C1 / ALPHA

def srd(a, d, p, size):
    a(f"s_mov_b32 s{d}, s{p}\ns_mov_b32 s{d+1}, s{p+1}\ns_mov_b32 s{d+2}, {hx(size)}\ns_mov_b32 s{d+3}, 0x00020000")

def vr(b, n): return f"v[{b}:{b+n-1}]" if n > 1 else f"v{b}"
def ar(b, n): return f"a[{b}:{b+n-1}]" if n > 1 else f"a{b}"

def slot_of(d):
    return 12 + d if d < 4 else (d - 4 if d < 12 else (d + 4 if d < 16 else d - 8))

def k1():
    a = Asm()
    XN, XS, WQL = 0, 1168, 74752
    a("s_cmp_ge_u32 s2, 256\ns_cbranch_scc1 K1_END")
    a("s_load_dwordx8 s[4:11], s[0:1], 0\ns_load_dwordx2 s[12:13], s[0:1], 96")
    a("v_and_b32 v1, 63, v0\nv_lshrrev_b32 v2, 6, v0")
    a("v_readfirstlane_b32 s34, v2")
    a("s_lshr_b32 s32, s2, 3\ns_and_b32 s33, s2, 7")
    a("v_mul_u32_u24 v3, 7282, v0\nv_lshrrev_b32 v3, 16, v3")
    a("v_mul_u32_u24 v4, 9, v3\nv_sub_u32 v4, v0, v4")
    a("v_and_b32 v5, 48, v3\nv_and_b32 v6, 3, v3\nv_lshlrev_b32 v6, 2, v6\nv_bfe_u32 v7, v3, 2, 2")
    a("v_add3_u32 v5, v5, v6, v7\nv_mul_u32_u24 v5, 1152, v5\nv_lshl_add_u32 v8, v4, 4, v5")
    a("s_waitcnt lgkmcnt(0)")
    srd(a, 16, 4, XBYTES); srd(a, 20, 6, 576*576*2); srd(a, 28, 12, WS_SIZE)
    a("s_cmp_ge_u32 s33, 4\ns_cselect_b32 s24, s10, s8\ns_cselect_b32 s25, s11, s9")
    a(f"s_mov_b32 s26, {576*18*2}\ns_mov_b32 s27, 0x00020000")
    a("s_mul_i32 s35, s32, 73728")
    a("s_mul_i32 s36, s33, 144")
    a(f"s_lshl_b32 s37, s34, 10\ns_add_u32 s37, s37, {WQL}")
    a("s_cmp_eq_u32 s34, 8\ns_cbranch_scc1 K1_KV")
    a("v_lshrrev_b32 v9, 3, v0\nv_and_b32 v10, 7, v0\nv_lshlrev_b32 v10, 4, v10")
    a("v_mul_u32_u24 v11, 1152, v9\nv_add_u32 v11, v11, v10")
    X0 = 32
    for i in range(9):
        a(f"buffer_load_dwordx4 {vr(X0+4*i,4)}, v11, s[16:19], s35 offen offset:{128*i}")
    def wq_dma():
        for b in range(9):
            a(f"s_add_u32 m0, s37, {b*9216}\ns_add_u32 s38, s36, {b*73728}")
            a("buffer_load_dwordx4 v8, s[20:23], s38 offen lds")
    wq_dma()
    a(f"v_mul_u32_u24 v12, {XS}, v9\nv_add_u32 v12, v12, v10")
    a("s_lshr_b32 s39, s34, 2\ns_lshl_b32 s40, s39, 5\ns_and_b32 s41, s34, 3")
    a(f"v_and_b32 v13, 31, v1\nv_add_u32 v13, s40, v13\nv_mul_u32_u24 v13, {XS}, v13\nv_lshrrev_b32 v14, 5, v1\nv_lshl_add_u32 v13, v14, 4, v13")
    a("v_bfe_u32 v15, v1, 2, 2\nv_lshlrev_b32 v15, 2, v15\nv_lshl_add_u32 v15, v14, 1, v15\nv_mul_u32_u24 v15, 144, v15")
    a("v_bfe_u32 v16, v1, 4, 1\nv_and_b32 v17, 3, v1\nv_lshl_add_u32 v16, v16, 2, v17")
    a("s_and_b32 s42, s41, 1")
    a("v_add_u32 v16, s42, v16\nv_lshrrev_b32 v16, s42, v16")
    a(f"s_mul_i32 s43, s41, 36\ns_lshl_b32 s44, s42, 2\ns_sub_u32 s43, s43, s44\ns_add_u32 s43, s43, {WQL}")
    a("v_lshl_add_u32 v15, v16, 3, v15\nv_add_u32 v15, s43, v15")
    a(f"v_add_u32 v18, {18*2304}, v15")
    a("s_mov_b32 s45, 0x3f803f80")
    for i in range(8): a(f"v_mov_b32 v{20+i}, 0")
    stamp(a, 0)
    a("s_waitcnt vmcnt(9)")
    stamp(a, 1)
    for i in range(36):
        a(f"v_dot2_f32_bf16 v{20+i%4}, v{X0+i}, s45, v{20+i%4}")
        a(f"v_dot2_f32_bf16 v{24+i%4}, v{X0+i}, v{X0+i}, v{24+i%4}")
    a("v_add_f32 v20, v20, v21\nv_add_f32 v22, v22, v23\nv_add_f32 v24, v24, v25\nv_add_f32 v26, v26, v27")
    a("v_add_f32 v20, v20, v22\nv_add_f32 v24, v24, v26")
    for dp in ("quad_perm:[1,0,3,2]", "quad_perm:[2,3,0,1]", "row_half_mirror"):
        a(f"v_add_f32_dpp v20, v20, v20 {dp} row_mask:0xf bank_mask:0xf")
        a(f"v_add_f32_dpp v24, v24, v24 {dp} row_mask:0xf bank_mask:0xf")
    a(f"v_mul_f32 v20, {hx(f2u(1/576))}, v20\nv_mul_f32 v24, {hx(f2u(1/576))}, v24")
    a("v_fma_f32 v24, -v20, v20, v24\nv_max_f32 v24, 0, v24")
    a(f"v_add_f32 v24, {hx(f2u(1e-5))}, v24\nv_rsq_f32 v24, v24")
    a("v_mul_f32 v20, v20, v24\nv_sub_f32 v20, 0, v20")
    for i in range(0, 36, 2):
        for e in (0, 1):
            a(f"v_lshlrev_b32 v{70+2*e}, 16, v{X0+i+e}\nv_and_b32 v{71+2*e}, 0xffff0000, v{X0+i+e}")
        for e in range(4): a(f"v_fma_f32 v{70+e}, v{70+e}, v24, v20")
        for e in (0, 1): a(f"v_cvt_pk_bf16_f32 v{X0+i+e}, v{70+2*e}, v{71+2*e}")
    stamp(a, 2)
    a("s_barrier")
    stamp(a, 3)
    for i in range(9): a(f"ds_write_b128 v12, {vr(X0+4*i,4)} offset:{128*i}")
    a("s_waitcnt vmcnt(0) lgkmcnt(0)")
    stamp(a, 4)
    a("s_barrier")
    stamp(a, 5)
    A0, B0, ACC, D = 80, 96, 112, 4
    def rd(s):
        base, off = (15, s*2304) if s < 18 else (18, (s-18)*2304)
        a(f"ds_read_b128 {vr(B0+4*(s%D),4)}, v13 offset:{32*s}")
        a(f"ds_read_b64_tr_b16 {vr(A0+4*(s%D),2)}, v{base} offset:{off}")
        a(f"ds_read_b64_tr_b16 {vr(A0+4*(s%D)+2,2)}, v{base} offset:{off+144}")
    for s in range(D): rd(s)
    for s in range(36):
        left = min(D-1, 35-s)
        a(f"s_waitcnt lgkmcnt({3*left})")
        a(f"v_mfma_f32_32x32x16_bf16 {vr(ACC,16)}, {vr(A0+4*(s%D),4)}, {vr(B0+4*(s%D),4)}, {'0' if s == 0 else vr(ACC,16)}")
        if s + D < 36: rd(s + D)
    stamp(a, 6)
    a(f"s_mov_b32 s46, {hx(f2u(CS))}")
    a("s_lshl_b32 s47, s32, 5\ns_lshl_b32 s48, s33, 2\ns_add_u32 s47, s47, s48\ns_add_u32 s47, s47, s41\ns_lshl_b32 s47, s47, 1\ns_add_u32 s47, s47, s39")
    a(f"s_lshl_b32 s48, s47, 10\ns_add_u32 s48, s48, {WS_QM}\ns_lshl_b32 s49, s47, 7\ns_add_u32 s49, s49, {WS_QL}")
    a("v_lshlrev_b32 v2, 4, v1\nv_and_b32 v3, 31, v1\nv_lshlrev_b32 v3, 2, v3")
    for i in range(16): a(f"v_mul_f32 v{ACC+i}, s46, v{ACC+i}")
    a("s_cmp_eq_u32 s42, 1\ns_cbranch_scc1 K1_ODD")
    for i in range(4): a(f"v_cvt_pk_bf16_f32 v{20+i}, v{ACC+2*i}, v{ACC+2*i+1}")
    a(f"v_cvt_pk_bf16_f32 v24, v{ACC+8}, v{ACC+9}")
    a("buffer_store_dwordx4 v[20:23], v2, s[28:31], s48 offen")
    a("s_mov_b32 exec_hi, 0")
    a("buffer_store_dword v24, v3, s[28:31], s49 offen")
    a("s_endpgm")
    a("K1_ODD:")
    for i, r in enumerate((2, 4, 10, 12)): a(f"v_cvt_pk_bf16_f32 v{20+i}, v{ACC+r}, v{ACC+r+1}")
    a(f"v_cvt_pk_bf16_f32 v24, v{ACC+14}, v{ACC+15}")
    a("buffer_store_dwordx4 v[20:23], v2, s[28:31], s48 offen")
    a("s_mov_b32 exec_lo, 0")
    a("buffer_store_dword v24, v3, s[28:31], s49 offen")
    a("s_endpgm")
    a("K1_KV:")
    for m in range(3):
        a(f"v_add_u32 v9, {64*m}, v1\nv_mul_u32_u24 v10, 21846, v9\nv_lshrrev_b32 v10, 16, v10")
        a("v_mul_u32_u24 v11, 3, v10\nv_sub_u32 v11, v9, v11")
        a(f"v_mul_u32_u24 v10, 36, v10\nv_lshl_add_u32 v{12+m}, v11, 4, v10")
    for m in range(27):
        a(f"s_mov_b32 m0, {XN + 1024*m}\ns_mov_b32 s38, {(m//3)*64*36}")
        a(f"buffer_load_dwordx4 v{12+m%3}, s[24:27], s38 offen lds")
    wq_dma()
    a("v_lshrrev_b32 v2, 4, v1\nv_bfe_u32 v3, v1, 2, 2\nv_lshl_add_u32 v3, v2, 3, v3\nv_mul_u32_u24 v3, 48, v3\nv_and_b32 v4, 3, v1\nv_lshl_add_u32 v3, v4, 3, v3")
    a("s_and_b32 s39, s33, 3\ns_lshl_b32 s40, s39, 4")
    a(f"v_and_b32 v4, 15, v1\nv_add_u32 v5, s40, v4\nv_mul_u32_u24 v5, {XS}, v5\nv_lshl_add_u32 v5, v2, 4, v5")
    W0 = 24
    a("s_waitcnt vmcnt(9)")
    n = 0
    for s in range(18):
        for blk in range(2):
            for e in range(2):
                a(f"ds_read_b64_tr_b16 {vr(W0 + (s*2+blk)*4 + 2*e, 2)}, v3 offset:{(32*s + 4*e)*48 + 32*blk}")
                n += 1
                if n % 12 == 0: a("s_waitcnt lgkmcnt(4)")
    a("s_waitcnt lgkmcnt(0)\ns_barrier")
    a("s_waitcnt vmcnt(0)\ns_barrier")
    XB = 8
    for s in range(2): a(f"ds_read_b128 {vr(XB+4*s,4)}, v5 offset:{64*s}")
    a("s_cmp_ge_u32 s33, 4\ns_cbranch_scc1 K1_V")
    def kvloop(isV):
        for s in range(18):
            a(f"s_waitcnt lgkmcnt({1 if s < 17 else 0})")
            for blk in range(2):
                w = vr(W0 + (s*2+blk)*4, 4); x = vr(XB+4*(s%2), 4); d = vr(16+4*blk, 4)
                A, B = (x, w) if isV else (w, x)
                a(f"v_mfma_f32_16x16x32_bf16 {d}, {A}, {B}, {'0' if s == 0 else d}")
            if s + 2 < 18: a(f"ds_read_b128 {vr(XB+4*(s%2),4)}, v5 offset:{64*(s+2)}")
    kvloop(False)
    a(f"s_mul_i32 s41, s32, {REC}")
    a("s_lshr_b32 s42, s39, 1\ns_and_b32 s43, s39, 1\ns_lshl_b32 s43, s43, 4")
    a("v_add_u32 v6, s43, v4")
    a("v_and_b32 v7, 1, v2\nv_lshl_add_u32 v7, v7, 5, v6\nv_lshlrev_b32 v7, 4, v7\nv_lshrrev_b32 v8, 1, v2\nv_lshl_add_u32 v7, v8, 3, v7")
    a("s_lshl_b32 s44, s42, 10\ns_add_u32 s44, s44, s41")
    a("v_cvt_pk_bf16_f32 v8, v16, v17\nv_cvt_pk_bf16_f32 v9, v18, v19\nv_cvt_pk_bf16_f32 v10, v20, v21")
    a("buffer_store_dwordx2 v[8:9], v7, s[28:31], s44 offen")
    a("v_cmp_gt_u32 vcc, 16, v1\nv_cndmask_b32 v10, 0, v10, vcc")
    a("v_mov_b32 v11, 0\nv_dot2_f32_bf16 v11, v8, v8, v11\nv_dot2_f32_bf16 v11, v9, v9, v11\nv_dot2_f32_bf16 v11, v10, v10, v11")
    a("v_mov_b32 v12, v11\nv_permlane32_swap_b32 v11, v12\nv_add_f32 v11, v11, v12")
    a("v_mov_b32 v12, v11\nv_permlane16_swap_b32 v11, v12\nv_add_f32 v11, v11, v12")
    for dp in ("quad_perm:[1,0,3,2]", "quad_perm:[2,3,0,1]", "row_half_mirror", "row_mirror"):
        a(f"v_max_f32_dpp v11, v11, v11 {dp} row_mask:0xf bank_mask:0xf")
    a("s_lshl_b32 s45, s42, 7\ns_add_u32 s45, s45, s41\ns_add_u32 s45, s45, 2048")
    a("v_lshlrev_b32 v6, 2, v6\nv_mov_b32 v13, 0")
    a(f"s_lshl_b32 s46, s32, 2\ns_add_u32 s46, s46, s39\ns_lshl_b32 s46, s46, 2\ns_add_u32 s46, s46, {WS_KMAX}")
    a("s_mov_b64 exec, 0xffff")
    a("buffer_store_dword v10, v6, s[28:31], s45 offen")
    a("s_mov_b64 exec, 1")
    a("buffer_store_dword v11, v13, s[28:31], s46 offen")
    a("s_endpgm")
    a("K1_V:")
    kvloop(True)
    a(f"s_mul_i32 s41, s32, {REC}\ns_mul_i32 s42, s39, 640\ns_add_u32 s41, s41, s42\ns_add_u32 s41, s41, 2304")
    a("v_and_b32 v6, 1, v2\nv_mul_u32_u24 v6, 320, v6\nv_lshrrev_b32 v7, 1, v2\nv_lshl_add_u32 v6, v7, 3, v6")
    a("v_add_u32 v7, 4, v4\nv_subrev_u32 v8, 4, v4\nv_cmp_gt_u32 vcc, 12, v4\nv_cndmask_b32 v7, v7, v8, vcc")
    a("v_add_u32 v8, 12, v4\nv_cmp_gt_u32 vcc, 4, v4\nv_cndmask_b32 v7, v7, v8, vcc")
    a("v_lshl_add_u32 v7, v7, 4, v6")
    a("v_cvt_pk_bf16_f32 v8, v16, v17\nv_cvt_pk_bf16_f32 v9, v18, v19\nv_cvt_pk_bf16_f32 v10, v20, v21\nv_cvt_pk_bf16_f32 v11, v22, v23")
    a("buffer_store_dwordx2 v[8:9], v7, s[28:31], s41 offen")
    a("v_mov_b32 v12, 0x3f803f80\nv_cmp_eq_u32 vcc, 2, v4\nv_cndmask_b32 v10, v10, v12, vcc\nv_cndmask_b32 v11, v11, v12, vcc")
    a("v_cmp_ne_u32 vcc, 3, v4\nv_cndmask_b32 v10, 0, v10, vcc\nv_cndmask_b32 v11, 0, v11, vcc")
    a("v_add_u32 v13, 8, v4\nv_lshl_add_u32 v13, v13, 4, v6")
    a("s_mov_b32 exec_lo, 0x000f000f\ns_mov_b32 exec_hi, 0x000f000f")
    a("buffer_store_dwordx2 v[10:11], v13, s[28:31], s41 offen")
    a("K1_END:")
    a("s_endpgm")
    return a, dict(grid=256, block=576, lds=157696)

KERNELS = [("qkv_kernel", k1)]

WS_TS = 0x8000000
def stamp(a, n):
    a(f"; STAMP {n}")
def instrument(a, kidx):
    from asmlib import I
    items = a.items
    out = []
    n = Asm()
    n("s_memrealtime s[96:97]\ns_memtime s[92:93]\ns_load_dwordx2 s[98:99], s[0:1], 96\nv_lshrrev_b32 v1, 6, v0\ns_nop 0\nv_readfirstlane_b32 s100, v1\ns_lshl_b32 s101, s2, 4\ns_nop 0\ns_add_u32 s100, s100, s101\ns_lshl_b32 s100, s100, 6")
    n(f"s_add_u32 s100, s100, {WS_TS + kidx*0x100000}\ns_waitcnt lgkmcnt(0)")
    for i in range(12): n(f"s_mov_b32 s{66+2*i}, s92")
    out += n.items
    for it in items:
        if isinstance(it, str) and it.startswith("; STAMP"):
            k = int(it.split()[2]); assert k < 12
            out.append(I(f"s_memtime s[{66+2*k}:{67+2*k}]")); continue
        if isinstance(it, I) and it.op == 's_endpgm':
            n = Asm()
            n("s_waitcnt vmcnt(0)\ns_memrealtime s[94:95]\ns_memtime s[90:91]\ns_mov_b64 exec, 1\ns_waitcnt lgkmcnt(0)\ns_sub_u32 s90, s90, s92\nv_mov_b32 v4, s96\nv_mov_b32 v5, s94\nv_mov_b32 v6, s90\nv_mov_b32 v7, 0\nv_mov_b32 v8, s100")
            n("global_store_dwordx4 v8, v[4:7], s[98:99]")
            for q in range(3):
                for e in range(4): n(f"s_sub_u32 s90, s{66+2*(4*q+e)}, s92\nv_mov_b32 v{12+4*q+e}, s90")
                n(f"global_store_dwordx4 v8, v[{12+4*q}:{15+4*q}], s[98:99] offset:{16+16*q}")
            out += n.items
        out.append(it)
    a.items = out

def build(kernels, instr=False):
    hdr = open(f"cdna_kernels/{NAME}.s.ref").read().split("; Override launch")[0]
    launches = ""; body = ""; desc = ""
    for name, fn in kernels:
        a, cfg = fn()
        if instr: instrument(a, [k for k, _ in kernels].index(name))
        a.fix()
        nv = a.maxreg('v') + 1; na = a.maxreg('a') + 1; ns = a.maxreg('s') + 1
        acc = (nv + 3) // 4 * 4
        tot = acc + na if na else nv
        launches += f"; @launch kernel={name} grid=({cfg['grid']},1,1) block=({cfg['block']},1,1) lds={cfg['lds']}\n"
        body += f".globl {name}\n.p2align 8\n.type {name},@function\n{name}:\n" + a.text()
        desc += f""".p2align 6
.amdhsa_kernel {name}
  .amdhsa_next_free_vgpr {tot}
  .amdhsa_next_free_sgpr {ns}
  .amdhsa_accum_offset {acc}
  .amdhsa_group_segment_fixed_size 0
  .amdhsa_kernarg_size 104
  .amdhsa_user_sgpr_count 2
  .amdhsa_user_sgpr_kernarg_segment_ptr 1
  .amdhsa_system_sgpr_workgroup_id_x 1
.end_amdhsa_kernel
"""
        print(f"{name}: vgpr {nv} agpr {na} sgpr {ns}", file=sys.stderr)
    return hdr + launches + '.amdgcn_target "amdgcn-amd-amdhsa--gfx950"\n.text\n' + body + '.section .rodata,"a"\n' + desc

if __name__ == "__main__":
    out = sys.argv[1] if len(sys.argv) > 1 else f"cdna_kernels/{NAME}.s"
    open(out, "w").write(build(KERNELS))
```

```python
import sys
import gen
from fused import main_kernel
for x in sys.argv:
    if x.startswith("--sel="): gen.STAMPSEL = x[6:].split(",")
gen.STAMPCYC = "--cyc" in sys.argv
ks = [("qkv_kernel", gen.k1), ("main_kernel", main_kernel)]
args = [x for x in sys.argv[1:] if not x.startswith("--")]
out = args[0] if args else f"cdna_kernels/{gen.NAME}.s"
open(out, "w").write(gen.build(ks, instr=("--instr" in sys.argv)))
```
